```python
import torch

def _softmax(x, axis=-1):
    return torch.softmax(x, dim=axis)
def _gelu(x):
    return torch.nn.functional.gelu(x, approximate="tanh")
def _silu(x):
    return torch.nn.functional.silu(x)
def _sigmoid(x):
    return torch.sigmoid(x)
def _layernorm(x, axis=-1, eps=1e-5):
    m = x.mean(dim=axis, keepdim=True)
    v = x.var(dim=axis, keepdim=True, unbiased=False)
    return (x - m) / torch.sqrt(v + eps)
def _scatter_add(tgt, idx, src, axis=0):
    return tgt.clone().index_add_(axis, idx, src)
def _segment_sum(src, seg, n):
    out = torch.zeros((n,) + src.shape[1:], dtype=src.dtype)
    return out.index_add_(0, seg, src)
def _pad(x, pw):
    flat = tuple(v for pair in reversed(pw) for v in pair)
    return torch.nn.functional.pad(x, flat)

kernel_name = 'standalone__mha_block_cached__near_ridge'

def setup_inputs():

    _w = (lambda a: (lambda t: t.to(torch.bfloat16) if t.is_floating_point() else t)(torch.as_tensor(a)))
    B, Sq, D = 16, 48, 1024
    H, Sk, Dh = 32, 48, 128
    return {
        "x": _w((lambda *s: torch.randn(*s, dtype=torch.bfloat16) * 0.8)(B, Sq, D)),
        "k_cache": _w((lambda *s: torch.randn(*s, dtype=torch.bfloat16) * 0.8)(B, H, Sk, Dh)),
        "v_cache": _w((lambda *s: torch.randn(*s, dtype=torch.bfloat16) * 0.05)(B, H, Sk, Dh)),
        "wq": _w((lambda *s: torch.randn(*s, dtype=torch.bfloat16) * 0.8)(D, H * Dh) * (D ** -0.5)),
        "wo": _w((lambda *s: torch.randn(*s, dtype=torch.bfloat16) * 0.05)(H * Dh, D) * ((H * Dh) ** -0.5)),
    }

def reference(x, k_cache, v_cache, wq, wo):
    B, Sq, D = x.shape
    H, Dh = 32, 128
    q = (lambda x, *d: x.permute(*d))((x @ wq).reshape(B, Sq, H, Dh), 0, 2, 1, 3)
    scores = torch.einsum("bhqd,bhkd->bhqk", q, k_cache) * (Dh ** -0.5)
    p = _softmax(scores, axis=-1)
    o = torch.einsum("bhqk,bhkd->bhqd", p, v_cache)
    return (lambda x, *d: x.permute(*d))(o, 0, 2, 1, 3).reshape(B, Sq, H * Dh) @ wo
```

```python
import re

TRANS = ('v_exp_f32','v_log_f32','v_rcp_f32','v_rsq_f32','v_sqrt_f32','v_sin_f32','v_cos_f32','v_rcp_iflag_f32')

def regs_of(tok):
    tok = tok.strip()
    neg = tok.startswith('-')
    if neg: tok = tok[1:]
    m = re.fullmatch(r'abs\((.*)\)', tok)
    if m: tok = m.group(1)
    if tok.startswith('|') and tok.endswith('|'): tok = tok[1:-1]
    m = re.fullmatch(r'([vas])\[(\d+):(\d+)\]', tok)
    if m:
        return {(m.group(1), i) for i in range(int(m.group(2)), int(m.group(3))+1)}
    m = re.fullmatch(r'([vas])(\d+)', tok)
    if m:
        return {(m.group(1), int(m.group(2)))}
    if tok == 'vcc': return {('s',106),('s',107)}
    if tok == 'vcc_lo': return {('s',106)}
    if tok == 'vcc_hi': return {('s',107)}
    if tok == 'm0': return {('s',124)}
    if tok == 'exec': return {('s',126),('s',127)}
    return set()

class Ins:
    __slots__=('text','op','dst','src','kind','passes','states','srcC','isdma','wide_store','ops')
    def __init__(self, text):
        self.text = text
        t = text.split(';')[0].strip()
        self.op = t.split()[0] if t else ''
        rest = t[len(self.op):].strip()
        ops=[]; depth=0; cur=''
        for ch in rest:
            if ch=='[': depth+=1
            if ch==']': depth-=1
            if ch==',' and depth==0:
                ops.append(cur.strip()); cur=''
            else: cur+=ch
        if cur.strip(): ops.append(cur.strip())
        mods=[]
        if ops:
            parts=ops[-1].split()
            if len(parts)>1:
                ops[-1]=parts[0]; mods=parts[1:]
        self.ops=ops
        op=self.op
        self.dst=set(); self.src=set(); self.srcC=set(); self.passes=0; self.states=1
        self.isdma=False; self.wide_store=False
        if op=='s_nop':
            self.kind='nop'; self.states=int(ops[0],0)+1; return
        if op.startswith('v_mfma'):
            self.kind='mfma'
            self.passes = 8 if '32x32' in op else 4
            self.dst=regs_of(ops[0]); self.srcC=regs_of(ops[3])
            self.src=regs_of(ops[1])|regs_of(ops[2])|self.srcC
            return
        if op.startswith('v_'):
            self.kind='valu'
            if op.startswith('v_cmp'):
                self.dst=regs_of(ops[0]);
                for o in ops[1:]: self.src|=regs_of(o)
                if op.startswith('v_cmpx'): self.dst|=regs_of('exec')
            elif op.startswith('v_permlane') and 'swap' in op:
                self.dst=regs_of(ops[0])|regs_of(ops[1]); self.src=set(self.dst)
            elif op in ('v_readfirstlane_b32','v_readlane_b32'):
                self.dst=regs_of(ops[0])
                for o in ops[1:]: self.src|=regs_of(o)
            elif op.startswith(('v_add_co','v_addc_co','v_sub_co','v_subb_co')):
                self.dst=regs_of(ops[0])|regs_of(ops[1])
                for o in ops[2:]: self.src|=regs_of(o)
            else:
                self.dst=regs_of(ops[0])
                for o in ops[1:]: self.src|=regs_of(o)
                if op.startswith(('v_fmac','v_pk_fmac','v_fmamk','v_dot2c')): self.src|=self.dst
                if op.startswith('v_cndmask') and len(ops)==3: self.src|=regs_of('vcc')
            return
        if op.startswith('ds_'):
            self.kind='ds'
            if op.startswith(('ds_read','ds_bpermute','ds_permute','ds_swizzle')):
                self.dst=regs_of(ops[0])
                for o in ops[1:]: self.src|=regs_of(o)
            else:
                for o in ops: self.src|=regs_of(o)
            return
        if op.startswith(('buffer_','global_','flat_')):
            self.kind='vmem'
            allm=' '.join(mods)
            if 'load' in op and (' lds' in ' '+allm or op.startswith('global_load_lds')):
                self.isdma=True
                for o in ops: self.src|=regs_of(o)
                self.src|=regs_of('m0')
            elif 'load' in op:
                self.dst=regs_of(ops[0])
                for o in ops[1:]: self.src|=regs_of(o)
            elif 'atomic' in op:
                for o in ops: self.src|=regs_of(o)
                if 'sc0' in mods: self.dst=regs_of(ops[0])
            elif op in ('buffer_wbl2','buffer_inv'):
                pass
            else:
                for o in ops: self.src|=regs_of(o)
                if 'x3' in op or 'x4' in op:
                    self.wide_store=True
            return
        if op.startswith('s_'):
            self.kind='salu'
            if op.startswith(('s_cmp','s_waitcnt','s_barrier','s_branch','s_cbranch','s_endpgm','s_setprio','s_sleep','s_bitcmp')):
                for o in ops: self.src|=regs_of(o)
            else:
                self.dst=regs_of(ops[0]) if ops else set()
                for o in ops[1:]: self.src|=regs_of(o)
                if 'saveexec' in op: self.dst|=regs_of('exec'); self.src|=regs_of('exec')
            return
        self.kind='other'

    def store_data(self):
        if self.op.startswith('buffer_store'): return regs_of(self.ops[0])
        if self.op.startswith('global_store'): return regs_of(self.ops[1])
        return set()

def only(rs, k): return {r for r in rs if r[0] in k}

def need(prev, cur):
    n=0
    pv=only(prev.dst,'va'); ps=only(prev.dst,'s')
    if prev.kind=='valu':
        if cur.kind=='mfma' and (pv & cur.src): n=max(n,2)
        if cur.kind=='mfma' and (prev.dst & regs_of('exec')): n=max(n,4)
        if cur.kind=='vmem' and (ps & cur.src): n=max(n,5)
        if cur.kind=='valu':
            if ps & cur.src: n=max(n,2)
            if cur.op in ('v_readlane_b32','v_writelane_b32') and (ps & cur.src): n=max(n,4)
            if cur.op in ('v_readfirstlane_b32','v_readlane_b32') and (pv & cur.src): n=max(n,1)
            if cur.op.startswith('v_permlane') and (pv & cur.src): n=max(n,2)
            if ('dpp' in cur.text or 'row_' in cur.text or 'quad_perm' in cur.text) and (pv & cur.src): n=max(n,2)
            if prev.op.split('_e')[0] in TRANS and (pv & cur.src): n=max(n,1)
            if ('op_sel' in prev.text or 'sdwa' in prev.text) and (pv & (cur.src|cur.dst)): n=max(n,1)
            if (prev.dst & regs_of('exec')): n=max(n,4)
        if cur.kind=='salu' and (ps & cur.src): n=max(n,1)
    if prev.kind=='mfma':
        p=prev.passes
        d=prev.dst
        if cur.kind=='mfma':
            if d & (cur.src - cur.srcC) or (d & (regs_of(cur.ops[1])|regs_of(cur.ops[2]))):
                n=max(n, 8 if p==4 else 12)
            if d & cur.srcC:
                if not (d==cur.srcC and prev.op==cur.op): n=max(n, 6 if p==4 else 10)
            if d & cur.dst and not (d & cur.srcC):
                n=max(n, 8 if p==4 else 12)
        elif cur.kind in ('valu','vmem','ds'):
            if d & (cur.src|cur.dst): n=max(n, 8 if p==4 else 12)
        if cur.kind=='valu' and (prev.srcC & cur.dst): n=max(n, 3 if p==4 else 7)
    if prev.kind=='salu':
        if cur.kind=='vmem' and cur.isdma and (prev.dst & regs_of('m0')): n=max(n,1)
    if prev.kind=='vmem' and prev.wide_store:
        sd=prev.store_data()
        if cur.kind=='valu' and (sd & cur.dst): n=max(n,2)
        elif sd & cur.dst: n=max(n,1)
    return n

class Asm:
    def __init__(self):
        self.out=[]
        self.nnop=0
    def raw(self, s): self.out.append(s)
    def label(self, l): self.out.append(l+':')
    def c(self, s): self.out.append('  ; '+s)
    def __call__(self, text):
        for line in text.split('\n'):
            line=line.strip()
            if not line: continue
            if line.startswith(';'): self.out.append('  '+line); continue
            ins=Ins(line)
            dist=0; req=0
            for prev in reversed(self.out):
                if not isinstance(prev,Ins): continue
                r=need(prev,ins)
                if r>dist: req=max(req, r-dist)
                dist+=prev.states
                if dist>=20: break
            while req>0:
                k=min(req,16)
                self.out.append(Ins('s_nop %d'%(k-1))); self.nnop+=1
                req-=k
            self.out.append(ins)
    def fence(self, n=12):
        self('s_nop %d'%(n-1))
    def text(self):
        return '\n'.join(('  '+o.text) if isinstance(o,Ins) else o for o in self.out)+'\n'
```

```python
import sys
from asmlib import Asm

NAME='standalone__mha_block_cached__near_ridge'
STAGE=28672
KVBASE=4*STAGE
WS_O=0
WS_P=8<<20
SZ_X=768*2048; SZ_W=1024*8192; SZ_KV=16*32*12288; SZ_O=16*128*3072; SZ_P=4*3072*1024; SZ_OUT=768*2048
SCALE='0x3db504f3'; LOG2E='0x3fb8aa3b'

V_LANE=0; V_A=[1,2,3]; V_B=[4,5,6,7]; V_KV=[8,9,10,11]; V_AADDR=[[12,13],[14,15]]; V_BADDR=[[16,17,18,19],[20,21,22,23]]
V_G=24; V_M=25
T0=26; T1=27; T2=28; T3=29; T4=30; T5=31
ACC=32; FA=80; FB=104

def srd(a, d, base, size, add=None):
    if add is None:
        a(f's_mov_b32 s{d}, s{base}')
        a(f's_mov_b32 s{d+1}, s{base+1}')
        a(f's_mov_b32 s{d+2}, {size}')
    else:
        a(f's_add_u32 s{d}, s{base}, s{add}')
        a(f's_addc_u32 s{d+1}, s{base+1}, 0')
        a(f's_sub_u32 s{d+2}, {size}, s{add}')
    a(f's_mov_b32 s{d+3}, 0x20000')

def gemm_core(a, g):
    vmq=[]
    def dma_stage(st):
        slot=st%4
        L=[]
        L.append(f's_add_u32 m0, s{g["sM0A"]}, {slot*STAGE}')
        for ii in range(3):
            va=g['vA'][ii] if len(g['vA'])==3 else g['vA'][0]
            off=f' offset:{ii*1024}' if ii else ''
            L.append(f'buffer_load_dwordx4 v{va}, s[{g["sA"]}:{g["sA"]+3}], s{g["sAo"]} offen{off} lds')
        L.append(f's_add_u32 m0, s{g["sM0B"]}, {slot*STAGE}')
        for ii in range(4):
            off=f' offset:{ii*1024}' if ii else ''
            L.append(f'buffer_load_dwordx4 v{g["vB"][ii]}, s[{g["sB"]}:{g["sB"]+3}], s{g["sBo"]} offen{off} lds')
        L.append(f's_add_u32 s{g["sAo"]}, s{g["sAo"]}, {g["stepA"]}')
        L.append(f's_add_u32 s{g["sBo"]}, s{g["sBo"]}, {g["stepB"]}')
        return L
    def emit(L, tag):
        for x in L:
            a(x)
            if x.startswith('buffer_load'): vmq.append(tag)
    def wait_for(tag):
        idx=max(i for i,t in enumerate(vmq) if t==tag)
        n=len(vmq)-1-idx
        a(f's_waitcnt vmcnt({n})')
        del vmq[:idx+1]
    def frag_reads(st,ks):
        slot=st%4; se=slot>>1; so=(slot&1)*STAGE
        L=[]
        for mt in range(3):
            r=FA+(ks*3+mt)*4
            L.append(f'ds_read_b128 v[{r}:{r+3}], v{g["aaddr"][se][ks]} offset:{so+g["aoff"](ks,mt)}')
        for t in range(4):
            r=FB+(ks*4+t)*4
            for hh in range(2):
                L.append(f'ds_read_b64_tr_b16 v[{r+2*hh}:{r+2*hh+1}], v{V_BADDR[se][t]} offset:{so+12288+ks*8192+hh*g["hhoff"]}')
        return L
    def mfmas(ks, first):
        L=[]
        for t in range(4):
            for mt in range(3):
                ac=ACC+(t*3+mt)*4
                fa=FA+(ks*3+mt)*4; fb=FB+(ks*4+t)*4
                c='0' if first else f'v[{ac}:{ac+3}]'
                L.append(f'v_mfma_f32_16x16x32_bf16 v[{ac}:{ac+3}], v[{fb}:{fb+3}], v[{fa}:{fa+3}], {c}')
        return L
    def interleave(M, others):
        n=len(M); k=len(others); j=0
        for i,m in enumerate(M):
            a(m)
            tgt=min(k,((i+1)*k+n-1)//n) if i<n-1 else k
            while j<tgt:
                x=others[j]; j+=1
                a(x[0])
                if x[1] is not None: vmq.append(x[1])
    for st in range(4):
        emit(dma_stage(st), st)
    if g.get('kv_pro'): emit(g['kv_pro'],'kv')
    if g.get('pre_wait'): g['pre_wait']()
    wait_for(0)
    a('s_barrier')
    for x in frag_reads(0,0): a(x)
    for st in range(16):
        a.c(f'---- stage {st}')
        a('s_waitcnt lgkmcnt(0)')
        interleave(mfmas(0, st==0), [(x,None) for x in frag_reads(st,1)])
        a('s_waitcnt lgkmcnt(0)')
        if st<15:
            wait_for(st+1)
            a('s_barrier')
            oth=[(x,None) for x in frag_reads(st+1,0)]
            if st+4<16:
                oth+= [(x, (st+4) if x.startswith('buffer_load') else None) for x in dma_stage(st+4)]
            interleave(mfmas(1,False), oth)
        else:
            for m in mfmas(1,False): a(m)
    return vmq

def lane_helpers(a):
    a('v_lshrrev_b32 v1, 6, v0')
    a('v_and_b32 v0, 63, v0')
    a('v_readfirstlane_b32 s36, v1')
    a(f'v_lshrrev_b32 v{V_G}, 4, v0')
    a(f'v_and_b32 v{V_M}, 15, v0')

def baddr_calc(a, rowshift):
    a(f'v_lshrrev_b32 v{T0}, 2, v{V_M}')
    a(f'v_and_b32 v{T1}, 3, v0')
    a(f'v_lshl_add_u32 v{T2}, v{V_G}, {rowshift}, v{T0}')
    a(f'v_lshlrev_b32 v{T2}, 8, v{T2}')
    a(f'v_and_b32 v{T3}, 1, v{T1}')
    a(f'v_lshl_add_u32 v{T2}, v{T3}, 3, v{T2}')
    a(f'v_and_b32 v{T3}, 1, v{V_G}')
    a(f'v_lshlrev_b32 v{T3}, 3, v{T3}')
    a(f'v_lshl_add_u32 v{T3}, v{T0}, 1, v{T3}')
    a(f'v_lshrrev_b32 v{T1}, 1, v{T1}')
    a('s_lshl_b32 s45, s51, 3')
    a(f'v_or_b32 v{T1}, s45, v{T1}')
    for t in range(4):
        a(f'v_or_b32 v{T0}, {2*t}, v{T1}')
        a(f'v_xor_b32 v{T0}, v{T0}, v{T3}')
        a(f'v_lshl_add_u32 v{V_BADDR[0][t]}, v{T0}, 4, v{T2}')
        a(f'v_add_u32 v{V_BADDR[1][t]}, {2*STAGE}, v{V_BADDR[0][t]}')

def header(a,K):
    a.raw(f'.globl {K}\n.p2align 8\n.type {K},@function\n{K}:')

def k1():
    a=Asm()
    header(a,'mha_attn_kernel')
    a('s_cmp_ge_u32 s2, 256')
    a('s_cbranch_scc1 L1_end')
    a('s_load_dwordx16 s[4:19], s[0:1], 0')
    lane_helpers(a)
    a('s_and_b32 s37, s2, 7')
    a('s_lshr_b32 s38, s2, 3')
    a('s_and_b32 s39, s38, 3')
    a('s_lshl_b32 s37, s37, 2')
    a('s_add_u32 s37, s37, s39')
    a('s_lshr_b32 s38, s38, 2')
    a(f'v_lshrrev_b32 v{T4}, 3, v0')
    a(f'v_and_b32 v{T5}, 7, v0')
    a('s_mul_i32 s44, s36, 3')
    for ii in range(3):
        a(f's_add_u32 s45, s44, {ii}')
        a('s_and_b32 s46, s45, 1')
        a('s_lshl_b32 s46, s46, 2')
        a(f'v_or_b32 v{T0}, s46, v{V_G}')
        a(f'v_xor_b32 v{T0}, v{T0}, v{T5}')
        a(f'v_lshlrev_b32 v{T0}, 4, v{T0}')
        a('s_lshl_b32 s45, s45, 14')
        if ii: a(f's_sub_u32 s45, s45, {ii*1024}')
        a(f'v_lshlrev_b32 v{T1}, 11, v{T4}')
        a(f'v_add3_u32 v{V_A[ii]}, v{T0}, v{T1}, s45')
    for ii in range(4):
        a(f'v_or_b32 v{T0}, {((ii>>1)&1)<<2}, v{V_G}')
        a(f'v_lshlrev_b32 v{T0}, 1, v{T0}')
        a(f'v_xor_b32 v{T0}, v{T0}, v{V_M}')
        a(f'v_lshlrev_b32 v{T0}, 4, v{T0}')
        a('s_lshl_b32 s45, s36, 17')
        if ii: a(f's_add_u32 s45, s45, {ii*4*8192-ii*1024}')
        a(f'v_lshlrev_b32 v{T1}, 13, v{V_G}')
        a(f'v_add3_u32 v{V_B[ii]}, v{T0}, v{T1}, s45')
    a('s_mul_i32 s42, s36, 3072')
    a('s_lshl_b32 s43, s36, 12')
    a('s_add_u32 s43, s43, 12288')
    a('s_mov_b32 s40, 0')
    a('s_mov_b32 s41, 0')
    a('s_waitcnt lgkmcnt(0)')
    a('s_mul_i32 s45, s38, 196608')
    srd(a,20,4,SZ_X,45)
    a('s_lshl_b32 s45, s37, 8')
    srd(a,24,10,SZ_W,45)
    a('s_and_b32 s46, s36, 1')
    a('s_lshl_b32 s45, s38, 1')
    a('s_add_u32 s45, s45, s46')
    a('s_lshl_b32 s45, s45, 5')
    a('s_add_u32 s45, s45, s37')
    a('s_mul_i32 s45, s45, 12288')
    a('s_cmp_ge_u32 s36, 2')
    a('s_cselect_b32 s46, s8, s6')
    a('s_cselect_b32 s47, s9, s7')
    srd(a,28,46,SZ_KV,45)
    srd(a,32,18,SZ_O,None)
    a('s_cmp_ge_u32 s36, 2')
    a('s_cbranch_scc1 L1_kvV')
    for i in range(4):
        a(f'v_or_b32 v{T0}, {i<<2}, v{V_G}')
        a(f'v_xor_b32 v{T0}, v{T0}, v{V_M}')
        a(f'v_lshlrev_b32 v{T0}, 4, v{T0}')
        a(f'v_lshl_add_u32 v{V_KV[i]}, v{V_G}, 8, v{T0}')
    a('s_branch L1_kvdone')
    a.label('L1_kvV')
    for i in range(4):
        a(f'v_or_b32 v{T0}, {(i&1)<<2}, v{V_G}')
        a(f'v_lshlrev_b32 v{T0}, 1, v{T0}')
        a(f'v_xor_b32 v{T0}, v{T0}, v{V_M}')
        a(f'v_lshlrev_b32 v{T0}, 4, v{T0}')
        a(f'v_lshl_add_u32 v{V_KV[i]}, v{V_G}, 8, v{T0}')
    a.label('L1_kvdone')
    a('s_mul_i32 s48, s36, 12288')
    a(f's_add_u32 s48, s48, {KVBASE}')
    kv=[]
    for grp in range(3):
        kv.append(f's_add_u32 m0, s48, {grp*4096}')
        kv.append(f's_mov_b32 s49, {grp*4096}')
        for i in range(4):
            off=f' offset:{i*1024}' if i else ''
            kv.append(f'buffer_load_dwordx4 v{V_KV[i]}, s[28:31], s49 offen{off} lds')
    def pre_wait():
        a('s_and_b32 s50, s36, 1')
        a('s_lshr_b32 s51, s36, 1')
        a(f'v_lshrrev_b32 v{T0}, 1, v{V_M}')
        a(f'v_xor_b32 v{T0}, v{T0}, v{V_G}')
        a(f'v_lshlrev_b32 v{T0}, 4, v{T0}')
        a('s_mul_i32 s45, s50, 6144')
        a(f'v_lshl_add_u32 v{T1}, v{V_M}, 7, s45')
        a(f'v_add_u32 v12, v{T0}, v{T1}')
        a('v_xor_b32 v13, 64, v12')
        a(f'v_add_u32 v14, {2*STAGE}, v12')
        a(f'v_add_u32 v15, {2*STAGE}, v13')
        baddr_calc(a,3)
    P=dict(vA=V_A, vB=V_B, sA=20, sB=24, sAo=40, sBo=41, sM0A=42, sM0B=43,
           stepA=128, stepB=64*8192, aaddr=V_AADDR, aoff=lambda ks,mt: mt*2048, hhoff=1024,
           kv_pro=kv, pre_wait=pre_wait)
    vmq=gemm_core(a,P)
    a.c('Q to LDS')
    a('s_mul_i32 s45, s50, 12288')
    a('s_lshl_b32 s46, s51, 11')
    a('s_add_u32 s45, s45, s46')
    a(f'v_lshrrev_b32 v1, 1, v{V_G}')
    a('v_lshlrev_b32 v1, 8, v1')
    a(f'v_and_b32 v2, 1, v{V_G}')
    a('v_lshl_add_u32 v1, v2, 3, v1')
    a(f'v_lshl_add_u32 v1, v{V_M}, 4, v1')
    a('v_add_u32 v1, s45, v1')
    for t in range(4):
        for mt in range(3):
            ac=ACC+(t*3+mt)*4
            r=FA+((t*3+mt)%6)*2
            a(f'v_cvt_pk_bf16_f32 v{r}, v{ac}, v{ac+1}')
            a(f'v_cvt_pk_bf16_f32 v{r+1}, v{ac+2}, v{ac+3}')
            a(f'ds_write_b64 v1, v[{r}:{r+1}] offset:{mt*4096+(t>>1)*1024+(t&1)*512}')
    a('s_waitcnt vmcnt(0) lgkmcnt(0)')
    a('s_barrier')
    a('s_mov_b32 s52, s36')
    a(f's_mov_b32 s56, {LOG2E}')
    a.label('L1_unit')
    a.fence(4)
    a('s_cmp_ge_u32 s52, 3')
    a('s_cselect_b32 s53, 1, 0')
    a('s_mul_i32 s54, s53, 3')
    a('s_sub_u32 s54, s52, s54')
    a('s_lshl_b32 s45, s52, 12')
    a('v_lshl_add_u32 v1, v0, 4, s45')
    a('s_mul_i32 s45, s53, 12288')
    a(f's_add_u32 s45, s45, {KVBASE}')
    a(f'v_xor_b32 v2, v{V_G}, v{V_M}')
    a('v_lshlrev_b32 v2, 4, v2')
    a(f'v_lshl_add_u32 v2, v{V_M}, 8, v2')
    a('v_add_u32 v2, s45, v2')
    a('v_xor_b32 v3, 64, v2')
    a('v_xor_b32 v4, 0x80, v2')
    a('v_xor_b32 v5, 0xc0, v2')
    QF=80; KF=96; S=32; X=44; TP=56; PP=68; VF32=192; VF16=224; OA=144; OP=176
    for U in range(4): a(f'ds_read_b128 v[{QF+4*U}:{QF+4*U+3}], v1 offset:{U*1024}')
    for t in range(2):
        for U in range(4): a(f'ds_read_b128 v[{KF+(t*4+U)*4}:{KF+(t*4+U)*4+3}], v{2+U} offset:{t*4096}')
    a(f'v_lshrrev_b32 v{T0}, 2, v{V_M}')
    a(f'v_and_b32 v{T1}, 3, v0')
    a(f'v_lshl_add_u32 v{T2}, v{V_G}, 2, v{T0}')
    a(f'v_lshlrev_b32 v{T2}, 8, v{T2}')
    a(f'v_and_b32 v{T3}, 1, v{T1}')
    a(f'v_lshl_add_u32 v{T2}, v{T3}, 3, v{T2}')
    a(f'v_and_b32 v{T3}, 1, v{V_G}')
    a(f'v_lshlrev_b32 v{T3}, 3, v{T3}')
    a(f'v_lshl_add_u32 v{T3}, v{T0}, 1, v{T3}')
    a(f'v_lshrrev_b32 v{T1}, 1, v{T1}')
    a(f'v_xor_b32 v{T1}, v{T1}, v{T3}')
    a(f'v_lshl_add_u32 v{T2}, v{T1}, 4, v{T2}')
    a('s_add_u32 s45, s45, 24576')
    a(f'v_add_u32 v6, s45, v{T2}')
    for t in range(1,8): a(f'v_xor_b32 v{6+t}, {32*t}, v6')
    a('s_waitcnt lgkmcnt(4)')
    for U in range(4):
        a(f'v_mfma_f32_16x16x32_bf16 v[{S}:{S+3}], v[{KF+U*4}:{KF+U*4+3}], v[{QF+4*U}:{QF+4*U+3}], '+('0' if U==0 else f'v[{S}:{S+3}]'))
    for U in range(4): a(f'ds_read_b128 v[{KF+(8+U)*4}:{KF+(8+U)*4+3}], v{2+U} offset:8192')
    a('s_waitcnt lgkmcnt(4)')
    for U in range(4):
        a(f'v_mfma_f32_16x16x32_bf16 v[{S+4}:{S+7}], v[{KF+(4+U)*4}:{KF+(4+U)*4+3}], v[{QF+4*U}:{QF+4*U+3}], '+('0' if U==0 else f'v[{S+4}:{S+7}]'))
    a('s_waitcnt lgkmcnt(0)')
    for U in range(4):
        a(f'v_mfma_f32_16x16x32_bf16 v[{S+8}:{S+11}], v[{KF+(8+U)*4}:{KF+(8+U)*4+3}], v[{QF+4*U}:{QF+4*U+3}], '+('0' if U==0 else f'v[{S+8}:{S+11}]'))
    def vreads(ts):
        for t in ts:
            a(f'ds_read_b64_tr_b16 v[{VF32+4*t}:{VF32+4*t+1}], v{6+t}')
            a(f'ds_read_b64_tr_b16 v[{VF32+4*t+2}:{VF32+4*t+3}], v{6+t} offset:4096')
            a(f'ds_read_b64_tr_b16 v[{VF16+2*t}:{VF16+2*t+1}], v{6+t} offset:8192')
    vreads(range(0,4))
    for p in range(6): a(f'v_cvt_pk_bf16_f32 v{TP+p}, v{S+2*p}, v{S+2*p+1}')
    for p in range(6):
        a(f'v_lshlrev_b32 v{X+2*p}, 16, v{TP+p}')
        a(f'v_and_b32 v{X+2*p+1}, 0xffff0000, v{TP+p}')
    for i in range(12): a(f'v_mul_f32 v{X+i}, {SCALE}, v{X+i}')
    for p in range(6): a(f'v_cvt_pk_bf16_f32 v{TP+p}, v{X+2*p}, v{X+2*p+1}')
    for p in range(6):
        a(f'v_lshlrev_b32 v{X+2*p}, 16, v{TP+p}')
        a(f'v_and_b32 v{X+2*p+1}, 0xffff0000, v{TP+p}')
    a('s_waitcnt lgkmcnt(0)')
    vreads(range(4,8))
    M=62; M2=63
    a(f'v_max3_f32 v{M}, v{X}, v{X+1}, v{X+2}')
    for i in range(3,11,2): a(f'v_max3_f32 v{M}, v{M}, v{X+i}, v{X+i+1}')
    a(f'v_max_f32 v{M}, v{M}, v{X+11}')
    for sw in ('v_permlane32_swap_b32','v_permlane16_swap_b32'):
        a(f'v_mov_b32 v{M2}, v{M}')
        a(f'{sw} v{M}, v{M2}')
        a(f'v_max_f32 v{M}, v{M}, v{M2}')
    a(f'v_mul_f32 v{M}, s56, v{M}')
    for i in range(12): a(f'v_fma_f32 v{X+i}, v{X+i}, s56, -v{M}')
    for i in range(12): a(f'v_exp_f32 v{X+i}, v{X+i}')
    SM=64
    a(f'v_add_f32 v{SM}, v{X}, v{X+1}')
    for i in range(2,12): a(f'v_add_f32 v{SM}, v{SM}, v{X+i}')
    for sw in ('v_permlane32_swap_b32','v_permlane16_swap_b32'):
        a(f'v_mov_b32 v{M2}, v{SM}')
        a(f'{sw} v{SM}, v{M2}')
        a(f'v_add_f32 v{SM}, v{SM}, v{M2}')
    a(f'v_rcp_f32 v{SM}, v{SM}')
    for i in range(12): a(f'v_mul_f32 v{X+i}, v{X+i}, v{SM}')
    for p in range(6): a(f'v_cvt_pk_bf16_f32 v{PP+p}, v{X+2*p}, v{X+2*p+1}')
    a('s_waitcnt lgkmcnt(0)')
    for t in range(8):
        a(f'v_mfma_f32_16x16x32_bf16 v[{OA+4*t}:{OA+4*t+3}], v[{VF32+4*t}:{VF32+4*t+3}], v[{PP}:{PP+3}], 0')
    for t in range(8):
        a(f'v_mfma_f32_16x16x16_bf16 v[{OA+4*t}:{OA+4*t+3}], v[{VF16+2*t}:{VF16+2*t+1}], v[{PP+4}:{PP+5}], v[{OA+4*t}:{OA+4*t+3}]')
    a('s_lshl_b32 s45, s38, 1')
    a('s_add_u32 s45, s45, s53')
    a('s_lshl_b32 s45, s45, 7')
    a('s_lshl_b32 s46, s37, 2')
    a('s_add_u32 s45, s45, s46')
    a('s_mul_i32 s45, s45, 3')
    a('s_add_u32 s45, s45, s54')
    a('s_lshl_b32 s45, s45, 10')
    a('v_lshlrev_b32 v1, 4, v0')
    for u in range(4):
        for h2 in range(2):
            t=2*u+h2
            a(f'v_cvt_pk_bf16_f32 v{OP+4*u+2*h2}, v{OA+4*t}, v{OA+4*t+1}')
            a(f'v_cvt_pk_bf16_f32 v{OP+4*u+2*h2+1}, v{OA+4*t+2}, v{OA+4*t+3}')
        a(f'buffer_store_dwordx4 v[{OP+4*u}:{OP+4*u+3}], v1, s[32:35], s45 offen')
        if u<3: a('s_add_u32 s45, s45, 3072')
    a('s_add_u32 s52, s52, 4')
    a('s_cmp_lt_u32 s52, 6')
    a('s_cbranch_scc1 L1_unit')
    a.label('L1_end')
    a('s_endpgm')
    return a

def k2():
    a=Asm()
    header(a,'mha_oproj_kernel')
    a('s_cmp_ge_u32 s2, 256')
    a('s_cbranch_scc1 L2_end')
    a('s_load_dwordx16 s[4:19], s[0:1], 0')
    lane_helpers(a)
    a('s_and_b32 s37, s2, 7')
    a('s_lshr_b32 s38, s2, 3')
    a('s_lshr_b32 s39, s37, 1')
    a('s_and_b32 s37, s37, 1')
    a('s_lshl_b32 s37, s37, 2')
    a('s_and_b32 s44, s38, 3')
    a('s_add_u32 s37, s37, s44')
    a('s_lshr_b32 s38, s38, 2')
    a('s_and_b32 s50, s36, 1')
    a('s_lshr_b32 s51, s36, 1')
    a('s_lshl_b32 s45, s38, 1')
    a('s_add_u32 s45, s45, s50')
    a('s_lshl_b32 s45, s45, 7')
    a('s_lshl_b32 s46, s39, 5')
    a('s_add_u32 s45, s45, s46')
    a('s_add_u32 s45, s45, s51')
    a('s_mul_i32 s45, s45, 3072')
    a('v_lshl_add_u32 v1, v0, 4, s45')
    for ii in range(4):
        a(f'v_or_b32 v{T0}, {(ii&1)<<2}, v{V_G}')
        a(f'v_lshlrev_b32 v{T0}, 1, v{T0}')
        a(f'v_xor_b32 v{T0}, v{T0}, v{V_M}')
        a(f'v_lshlrev_b32 v{T0}, 4, v{T0}')
        a('s_lshl_b32 s45, s36, 15')
        if ii: a(f's_add_u32 s45, s45, {ii*4*2048-ii*1024}')
        a(f'v_lshlrev_b32 v{T1}, 11, v{V_G}')
        a(f'v_add3_u32 v{V_B[ii]}, v{T0}, v{T1}, s45')
    a('s_mul_i32 s42, s36, 3072')
    a('s_lshl_b32 s43, s36, 12')
    a('s_add_u32 s43, s43, 12288')
    a('s_mov_b32 s40, 0')
    a('s_mov_b32 s41, 0')
    a('s_waitcnt lgkmcnt(0)')
    srd(a,20,18,SZ_O,None)
    a('s_lshl_b32 s45, s39, 21')
    a('s_lshl_b32 s46, s37, 8')
    a('s_add_u32 s45, s45, s46')
    srd(a,24,12,SZ_W,45)
    a(f's_mov_b32 s45, {WS_P}')
    srd(a,32,18,WS_P+SZ_P,45)
    def pre_wait():
        a('s_mul_i32 s45, s50, 3072')
        a('v_lshl_add_u32 v12, v0, 4, s45')
        a(f'v_add_u32 v14, {2*STAGE}, v12')
        baddr_calc(a,2)
    P=dict(vA=[1], vB=V_B, sA=20, sB=24, sAo=40, sBo=41, sM0A=42, sM0B=43,
           stepA=6144, stepB=64*2048, aaddr=[[12,12],[14,14]], aoff=lambda ks,mt: ks*6144+mt*1024, hhoff=4096,
           pre_wait=pre_wait)
    gemm_core(a,P)
    a('s_mul_i32 s45, s39, 48')
    a('s_mul_i32 s46, s38, 6')
    a('s_add_u32 s45, s45, s46')
    a('s_mul_i32 s46, s50, 3')
    a('s_add_u32 s45, s45, s46')
    a('s_lshl_b32 s45, s45, 6')
    a('s_lshl_b32 s46, s37, 3')
    a('s_add_u32 s45, s45, s46')
    a('s_lshl_b32 s46, s51, 2')
    a('s_add_u32 s45, s45, s46')
    a('s_lshl_b32 s45, s45, 10')
    a('v_lshlrev_b32 v1, 4, v0')
    for mt in range(3):
        for t in range(4):
            ac=ACC+(t*3+mt)*4
            off=f' offset:{t*1024}' if t else ''
            a(f'buffer_store_dwordx4 v[{ac}:{ac+3}], v1, s[32:35], s45 offen{off}')
        if mt<2: a('s_add_u32 s45, s45, 65536')
    a.label('L2_end')
    a('s_endpgm')
    return a

def k3():
    a=Asm()
    header(a,'mha_reduce_kernel')
    a('s_cmp_ge_u32 s2, 256')
    a('s_cbranch_scc1 L3_end')
    a('s_load_dwordx16 s[4:19], s[0:1], 0')
    lane_helpers(a)
    a('s_lshl_b32 s37, s2, 2')
    a('s_add_u32 s37, s37, s36')
    a('s_mul_i32 s37, s37, 3')
    a('v_lshlrev_b32 v1, 4, v0')
    a(f'v_lshlrev_b32 v2, 11, v{V_M}')
    a(f'v_lshl_add_u32 v2, v{V_G}, 3, v2')
    a('s_waitcnt lgkmcnt(0)')
    a(f's_mov_b32 s45, {WS_P}')
    srd(a,20,18,WS_P+SZ_P,45)
    srd(a,24,14,SZ_OUT,None)
    for i in range(3):
        a(f's_add_u32 s38, s37, {i}')
        a('s_lshl_b32 s38, s38, 10')
        for ks in range(4):
            r=32+(i*4+ks)*4
            a(f'buffer_load_dwordx4 v[{r}:{r+3}], v1, s[20:23], s38 offen')
            if ks<3: a(f's_add_u32 s38, s38, {3072*1024}')
    for i in range(3):
        a(f's_waitcnt vmcnt({(2-i)*4+i})')
        r=32+i*16
        for e in range(4):
            a(f'v_add_f32 v{r+e}, v{r+e}, v{r+4+e}')
            a(f'v_add_f32 v{r+e}, v{r+e}, v{r+8+e}')
            a(f'v_add_f32 v{r+e}, v{r+e}, v{r+12+e}')
        a(f'v_cvt_pk_bf16_f32 v{r+4}, v{r}, v{r+1}')
        a(f'v_cvt_pk_bf16_f32 v{r+5}, v{r+2}, v{r+3}')
        a(f's_add_u32 s38, s37, {i}')
        a('s_lshr_b32 s39, s38, 6')
        a('s_and_b32 s38, s38, 63')
        a('s_lshl_b32 s39, s39, 15')
        a('s_lshl_b32 s38, s38, 5')
        a('s_add_u32 s38, s38, s39')
        a(f'buffer_store_dwordx2 v[{r+4}:{r+5}], v2, s[24:27], s38 offen')
    a.label('L3_end')
    a('s_endpgm')
    return a

def kd(name, vg):
    return f""".p2align 6
.amdhsa_kernel {name}
  .amdhsa_next_free_vgpr {vg}
  .amdhsa_next_free_sgpr 96
  .amdhsa_accum_offset {vg}
  .amdhsa_group_segment_fixed_size 0
  .amdhsa_kernarg_size 64
  .amdhsa_user_sgpr_count 2
  .amdhsa_user_sgpr_kernarg_segment_ptr 1
  .amdhsa_system_sgpr_workgroup_id_x 1
.end_amdhsa_kernel
"""

def build():
    ref=open('cdna_kernels/'+NAME+'.s.ref').read().split('\n')
    hdr=[l for l in ref if l.startswith(';') and '@launch' not in l and 'Override' not in l and 'grid=ceil' not in l]
    out='\n'.join(hdr[:9])+'\n'
    out+='; @launch kernel=mha_attn_kernel grid=(256,1,1) block=(256,1,1) lds=163840\n'
    out+='; @launch kernel=mha_oproj_kernel grid=(256,1,1) block=(256,1,1) lds=114688\n'
    out+='; @launch kernel=mha_reduce_kernel grid=(256,1,1) block=(256,1,1) lds=0\n'
    out+='.amdgcn_target "amdgcn-amd-amdhsa--gfx950"\n.text\n'
    for k in (k1(),k2(),k3()): out+=k.text()
    out+='.section .rodata,"a"\n'
    out+=kd('mha_attn_kernel',240)+kd('mha_oproj_kernel',136)+kd('mha_reduce_kernel',80)
    return out

if __name__=='__main__':
    dst=sys.argv[1] if len(sys.argv)>1 else 'cdna_kernels/'+NAME+'.s'
    open(dst,'w').write(build())
    print('wrote',dst)
```

```python
import sys
from asmlib import Asm

NAME='standalone__mha_block_cached__near_ridge'
K=NAME+'_kernel'
STAGE=28672
KVBASE=4*STAGE
WS_O=0
WS_P=8<<20
WS_FO=20<<20
WS_FP=(20<<20)+65536
SZ_WS=21<<20
SZ_X=768*2048; SZ_W=1024*8192; SZ_KV=16*32*12288; SZ_OUT=768*2048
SCALE='0x3db504f3'; LOG2E='0x3fb8aa3b'
SPIN=1<<15

OPT=dict(stamps=0, kvnt=1, rot=1, kvst=0, prio=0, npro=4)

V_A=[1,2,3]; V_B=[4,5,6,7]; V_B2=[8,9,10,11]
V_KV=[8,9,10,11]
V_AADDR=[[12,13],[14,15]]; V_BADDR=[[16,17,18,19],[20,21,22,23]]
V_G=24; V_M=25
T0=26; T1=27; T2=28; T3=29; T4=30; T5=31
ACC=32; FA=80; FB=104
V_N=140
V_JUNK=252
S_XP=4; S_KP=6; S_VP=8; S_WQP=10; S_WOP=12; S_OUTP=14; S_DBGP=16; S_WSP=18
R_X=20; R_WQ=24; R_KV=28; R_WS=32; R_WO=84; R_OUT=88; R_DBG=92
S_W=36; S_HEAD=37; S_BP=38; S_KS=39; S_NT=40
S_AO=41; S_BO=42; S_M0A=43; S_M0B=44
S_T0=45; S_T1=46; S_T2=47; S_KVM=48; S_T3=49; S_WM=50; S_WN=51
S_BB=52; S_MT=53; S_CUR=54; S_CNT=55; S_L2E=56; S_LI=57
S_N=58
S_ST=60
NST=12

def srd(a, d, base, size, add=None):
    if add is None:
        a(f's_mov_b32 s{d}, s{base}')
        a(f's_mov_b32 s{d+1}, s{base+1}')
        a(f's_mov_b32 s{d+2}, {size}')
    else:
        a(f's_add_u32 s{d}, s{base}, s{add}')
        a(f's_addc_u32 s{d+1}, s{base+1}, 0')
        a(f's_sub_u32 s{d+2}, {size}, s{add}')
    a(f's_mov_b32 s{d+3}, 0x20000')

def stamp(a,j):
    if OPT['stamps']: a(f's_memrealtime s[{S_ST+2*j}:{S_ST+2*j+1}]')
def stamp_flush(a,tag,li):
    if not OPT['stamps']: return
    a('s_waitcnt lgkmcnt(0)')
    a(f's_mov_b32 s{S_T0}, {(64<<20)+li*256*NST*8}')
    a(f's_mul_i32 s{S_T1}, s2, {NST*8}')
    a(f's_add_u32 s{S_T0}, s{S_T0}, s{S_T1}')
    srd(a,R_X,S_WSP,256<<20,S_T0)
    a('v_mov_b32 v2, 0')
    for j in range(NST):
        a(f'v_mov_b32 v4, s{S_ST+2*j}')
        a(f'v_mov_b32 v5, s{S_ST+2*j+1}')
        a(f'buffer_store_dwordx2 v[4:5], v2, s[{R_X}:{R_X+3}], 0 offen offset:{8*j}')
        a('s_nop 1')

FINE=[]
V_FS=200
def fstamp(a,name):
    if OPT['stamps']!=2: return
    i=len(FINE)
    if i>0:
        a('s_waitcnt lgkmcnt(0)')
        a(f'v_writelane_b32 v{V_FS+((i-1)>>6)}, s96, {(i-1)&63}')
    a('s_memrealtime s[96:97]')
    FINE.append(name)
def fstamp_flush(a):
    if OPT['stamps']!=2: return
    i=len(FINE)
    a('s_waitcnt lgkmcnt(0)')
    a(f'v_writelane_b32 v{V_FS+((i-1)>>6)}, s96, {(i-1)&63}')
    a(f's_cmp_eq_u32 s{S_W}, 6')
    a('s_cbranch_scc0 L_nofs')
    a(f's_mov_b32 s{S_T0}, {(65<<20)}')
    a(f's_lshl_b32 s{S_T1}, s2, 9')
    a(f's_add_u32 s{S_T0}, s{S_T0}, s{S_T1}')
    srd(a,R_X,S_WSP,256<<20,S_T0)
    a('v_lshlrev_b32 v2, 2, v0')
    a(f'buffer_store_dword v{V_FS}, v2, s[{R_X}:{R_X+3}], 0 offen')
    a(f'buffer_store_dword v{V_FS+1}, v2, s[{R_X}:{R_X+3}], 0 offen offset:256')
    a.label('L_nofs')
    OPT['_names']=list(FINE)

class VM:
    def __init__(s,a): s.a=a; s.q=[]
    def issue(s,text,tag):
        s.a(text); s.q.append(tag)
    def note(s,tag): s.q.append(tag)
    def wait(s,tag):
        idx=max(i for i,t in enumerate(s.q) if t==tag)
        n=len(s.q)-1-idx
        s.a(f's_waitcnt vmcnt({n})')
        del s.q[:idx+1]
    def waitall(s):
        s.a('s_waitcnt vmcnt(0)'); s.q=[]

def frag_reads(st,ks):
    slot=st%4; se=slot>>1; so=(slot&1)*STAGE
    L=[]
    for mt in range(3):
        r=FA+(ks*3+mt)*4
        L.append(f'ds_read_b128 v[{r}:{r+3}], v{V_AADDR[se][ks]} offset:{so+mt*2048}')
    for t in range(4):
        r=FB+(ks*4+t)*4
        for hh in range(2):
            L.append(f'ds_read_b64_tr_b16 v[{r+2*hh}:{r+2*hh+1}], v{V_BADDR[se][t]} offset:{so+12288+ks*8192+hh*1024}')
    return L
def mfmas(ks, first):
    L=[]
    for t in range(4):
        for mt in range(3):
            ac=ACC+(t*3+mt)*4
            fa=FA+(ks*3+mt)*4; fb=FB+(ks*4+t)*4
            c='0' if first else f'v[{ac}:{ac+3}]'
            L.append(f'v_mfma_f32_16x16x32_bf16 v[{ac}:{ac+3}], v[{fb}:{fb+3}], v[{fa}:{fa+3}], {c}')
    return L
def interleave(a, M, others):
    n=len(M); k=len(others); j=0
    for i,m in enumerate(M):
        a(m)
        tgt=min(k,((i+1)*k+n-1)//n) if i<n-1 else k
        while j<tgt:
            a(others[j]); j+=1

def consumer_loop(a, extra2=None, prebar=None, lastreads=False):
    for x in frag_reads(0,0): a(x)
    for st in range(16):
        a.c(f'---- stage {st}')
        a('s_waitcnt lgkmcnt(0)')
        interleave(a, mfmas(0, st==0), frag_reads(st,1))
        if prebar and st in prebar: prebar[st]()
        a('s_waitcnt lgkmcnt(0)')
        a('s_barrier')
        oth=frag_reads(st+1,0) if st<15 else []
        if extra2 and st in extra2:
            ex=extra2[st]
            oth=oth+ex
        interleave(a, mfmas(1,False), oth)

def baddr_calc(a, rot):
    a(f'v_lshrrev_b32 v{T0}, 2, v{V_M}')
    a(f'v_and_b32 v{T1}, 3, v0')
    a(f'v_lshl_add_u32 v{T2}, v{V_G}, 3, v{T0}')
    a(f'v_lshlrev_b32 v{T2}, 8, v{T2}')
    a(f'v_and_b32 v{T3}, 1, v{T1}')
    a(f'v_lshl_add_u32 v{T2}, v{T3}, 3, v{T2}')
    a(f'v_and_b32 v{T3}, 1, v{V_G}')
    a(f'v_lshlrev_b32 v{T3}, 3, v{T3}')
    a(f'v_lshl_add_u32 v{T3}, v{T0}, 1, v{T3}')
    a(f'v_lshrrev_b32 v{T1}, 1, v{T1}')
    a(f's_lshl_b32 s{S_T0}, s{S_WN}, 3')
    a(f'v_or_b32 v{T1}, s{S_T0}, v{T1}')
    for t in range(4):
        if rot:
            a(f's_add_u32 s{S_T0}, s{S_KS}, {t}')
            a(f's_and_b32 s{S_T0}, s{S_T0}, 3')
            a(f's_lshl_b32 s{S_T0}, s{S_T0}, 1')
            a(f'v_or_b32 v{T0}, s{S_T0}, v{T1}')
        else:
            a(f'v_or_b32 v{T0}, {2*t}, v{T1}')
        a(f'v_xor_b32 v{T0}, v{T0}, v{T3}')
        a(f'v_lshl_add_u32 v{V_BADDR[0][t]}, v{T0}, 4, v{T2}')
        a(f'v_add_u32 v{V_BADDR[1][t]}, {2*STAGE}, v{V_BADDR[0][t]}')

def late_srds(a):
    srd(a,R_WS,S_WSP,SZ_WS,None)
    srd(a,R_DBG,S_DBGP,256,None)
    srd(a,R_OUT,S_OUTP,SZ_OUT,None)
    a(f's_lshl_b32 s{S_T0}, s{S_KS}, 21')
    a(f's_lshl_b32 s{S_T1}, s{S_NT}, 8')
    a(f's_add_u32 s{S_T0}, s{S_T0}, s{S_T1}')
    srd(a,R_WO,S_WOP,SZ_W,S_T0)

def nonce_get(a, tag, vm_wait):
    vm_wait()
    a(f's_mov_b32 s{S_CNT}, {SPIN}')
    a.label(f'Ln_{tag}')
    a(f'v_readfirstlane_b32 s{S_N}, v{V_N}')
    a(f'v_readfirstlane_b32 s{S_N+1}, v{V_N+1}')
    a(f's_cmp_lg_u32 s{S_N+1}, 0')
    a(f's_cbranch_scc1 Lnd_{tag}')
    a(f's_sub_u32 s{S_CNT}, s{S_CNT}, 1')
    a(f's_cmp_eq_u32 s{S_CNT}, 0')
    a(f's_cbranch_scc1 Lnd_{tag}')
    a('s_sleep 2')
    a(f'v_mov_b32 v{T0}, 0')
    a(f'buffer_load_dwordx2 v[{V_N}:{V_N+1}], v{T0}, s[{R_DBG}:{R_DBG+3}], 0 offen sc1')
    a('s_waitcnt vmcnt(0)')
    a(f's_branch Ln_{tag}')
    a.label(f'Lnd_{tag}')

def poll(a, tag, voff, soff, vd):
    a(f's_mov_b32 s{S_CNT}, {SPIN}')
    a.label(f'Lp_{tag}')
    a(f'buffer_load_dwordx2 v[{vd}:{vd+1}], v{voff}, s[{R_WS}:{R_WS+3}], s{soff} offen sc1')
    a('s_waitcnt vmcnt(0)')
    a(f'v_cmp_ne_u64 vcc, s[{S_N}:{S_N+1}], v[{vd}:{vd+1}]')
    a(f's_cbranch_vccz Lpd_{tag}')
    a(f's_sub_u32 s{S_CNT}, s{S_CNT}, 1')
    a(f's_cmp_eq_u32 s{S_CNT}, 0')
    a(f's_cbranch_scc0 Lp_{tag}')
    a.label(f'Lpd_{tag}')

def flag_store(a, soff_reg, voff):
    a(f'v_mov_b32 v{V_N}, s{S_N}')
    a(f'v_mov_b32 v{V_N+1}, s{S_N+1}')
    a(f'buffer_store_dwordx2 v[{V_N}:{V_N+1}], v{voff}, s[{R_WS}:{R_WS+3}], s{soff_reg} offen sc1')

def build_kernel():
    a=Asm()
    a.raw(f'.globl {K}\n.p2align 8\n.type {K},@function\n{K}:')
    a('s_cmp_ge_u32 s2, 256')
    a('s_cbranch_scc1 L_end')
    a('s_load_dwordx16 s[4:19], s[0:1], 0')
    for j in range(NST): stamp(a,j)
    a('v_lshrrev_b32 v1, 6, v0')
    a('v_and_b32 v0, 63, v0')
    a(f'v_readfirstlane_b32 s{S_W}, v1')
    a(f'v_lshrrev_b32 v{V_G}, 4, v0')
    a(f'v_and_b32 v{V_M}, 15, v0')
    a(f's_and_b32 s{S_T0}, s2, 7')
    a(f's_lshr_b32 s{S_BP}, s2, 3')
    a(f's_and_b32 s{S_T1}, s{S_BP}, 3')
    a(f's_lshl_b32 s{S_HEAD}, s{S_T0}, 2')
    a(f's_add_u32 s{S_HEAD}, s{S_HEAD}, s{S_T1}')
    a(f's_lshr_b32 s{S_BP}, s{S_BP}, 2')
    a(f's_lshr_b32 s{S_KS}, s{S_HEAD}, 3')
    a(f's_and_b32 s{S_NT}, s{S_HEAD}, 7')
    a(f's_cmp_ge_u32 s{S_W}, 4')
    a('s_cbranch_scc0 L_cons1')
    a.c('==== loader P1')
    vm=VM(a)
    a(f's_sub_u32 s{S_LI}, s{S_W}, 4')
    if OPT['rot']:
        a(f's_lshl_b32 s{S_CUR}, s{S_T1}, 1')
        a(f's_add_u32 s{S_CUR}, s{S_CUR}, s{S_BP}')
        a(f's_lshl_b32 s{S_CUR}, s{S_CUR}, 1')
        a(f's_and_b32 s{S_CUR}, s{S_CUR}, 15')
    else:
        a(f's_mov_b32 s{S_CUR}, 0')
    a(f'v_lshrrev_b32 v{T4}, 3, v0')
    a(f'v_and_b32 v{T5}, 7, v0')
    a(f's_mul_i32 s{S_T3}, s{S_LI}, 3')
    for ii in range(3):
        a(f's_add_u32 s{S_T0}, s{S_T3}, {ii}')
        a(f's_and_b32 s{S_T1}, s{S_T0}, 1')
        a(f's_lshl_b32 s{S_T1}, s{S_T1}, 2')
        a(f'v_or_b32 v{T0}, s{S_T1}, v{V_G}')
        a(f'v_xor_b32 v{T0}, v{T0}, v{T5}')
        a(f'v_lshlrev_b32 v{T0}, 4, v{T0}')
        a(f's_lshl_b32 s{S_T0}, s{S_T0}, 14')
        if ii: a(f's_sub_u32 s{S_T0}, s{S_T0}, {ii*1024}')
        a(f'v_lshlrev_b32 v{T1}, 11, v{T4}')
        a(f'v_add3_u32 v{V_A[ii]}, v{T0}, v{T1}, s{S_T0}')
    for hh in range(2):
        a(f'v_or_b32 v{T2+hh}, {hh<<2}, v{V_G}')
        a(f'v_lshlrev_b32 v{T2+hh}, 1, v{T2+hh}')
        a(f'v_xor_b32 v{T2+hh}, v{T2+hh}, v{V_M}')
        a(f'v_lshlrev_b32 v{T2+hh}, 4, v{T2+hh}')
    a(f'v_lshlrev_b32 v{T1}, 13, v{V_G}')
    for ii in range(4):
        a(f's_lshl_b32 s{S_T0}, s{S_LI}, 17')
        if ii: a(f's_add_u32 s{S_T0}, s{S_T0}, {ii*4*8192-ii*1024}')
        a(f'v_add3_u32 v{V_B[ii]}, v{T2+(ii>>1)}, v{T1}, s{S_T0}')
    a(f's_mul_i32 s{S_M0A}, s{S_LI}, 3072')
    a(f's_lshl_b32 s{S_M0B}, s{S_LI}, 12')
    a(f's_add_u32 s{S_M0B}, s{S_M0B}, 12288')
    a(f's_lshl_b32 s{S_AO}, s{S_CUR}, 7')
    a(f's_lshl_b32 s{S_BO}, s{S_CUR}, 19')
    a('s_waitcnt lgkmcnt(0)')
    a(f's_mul_i32 s{S_T0}, s{S_BP}, 196608')
    srd(a,R_X,S_XP,SZ_X,S_T0)
    a(f's_lshl_b32 s{S_T0}, s{S_HEAD}, 8')
    srd(a,R_WQ,S_WQP,SZ_W,S_T0)
    def issueA(rs,va,st,tag,aux=''):
        slot=st%4
        a(f's_add_u32 m0, s{S_M0A}, {slot*STAGE}')
        for ii in range(3):
            off=f' offset:{ii*1024}' if ii else ''
            vm.issue(f'buffer_load_dwordx4 v{va[ii]}, s[{rs}:{rs+3}], s{S_AO} offen{off}{aux} lds',tag)
    def issueB(rs,vb,st,tag,aux=''):
        slot=st%4
        a(f's_add_u32 m0, s{S_M0B}, {slot*STAGE}')
        for ii in range(4):
            off=f' offset:{ii*1024}' if ii else ''
            vm.issue(f'buffer_load_dwordx4 v{vb[ii]}, s[{rs}:{rs+3}], s{S_BO} offen{off}{aux} lds',tag)
    def adv1():
        a(f's_add_u32 s{S_AO}, s{S_AO}, 128')
        a(f's_and_b32 s{S_AO}, s{S_AO}, 2047')
        a(f's_lshl_b32 s{S_BO}, s{S_AO}, 12')
    fstamp(a,'start')
    NPRO=OPT['npro']
    for st in range(NPRO):
        issueA(R_X,V_A,st,st); issueB(R_WQ,V_B,st,st); adv1()
        fstamp(a,f'pro{st}')
    stamp(a,1)
    late_srds(a)
    a(f'v_lshlrev_b32 v{T1}, 11, v{V_G}')
    a(f's_lshr_b32 s{S_T1}, s{S_LI}, 1')
    a(f's_lshl_b32 s{S_T1}, s{S_T1}, 5')
    a(f's_and_b32 s{S_T2}, s{S_LI}, 1')
    a(f's_lshl_b32 s{S_T2}, s{S_T2}, 3')
    a(f's_add_u32 s{S_T1}, s{S_T1}, s{S_T2}')
    a(f's_lshl_b32 s{S_T1}, s{S_T1}, 11')
    for ii in range(4):
        c=(16*(ii&1)+4*(ii>>1))*2048-ii*1024
        a(f's_add_u32 s{S_T0}, s{S_T1}, {c}' if c>=0 else f's_sub_u32 s{S_T0}, s{S_T1}, {-c}')
        a(f'v_add3_u32 v{V_B2[ii]}, v{T2+(ii>>1)}, v{T1}, s{S_T0}')
    vm.wait(0)
    fstamp(a,'w0')
    a('s_barrier')
    stamp(a,2)
    fstamp(a,'B-1')
    for st in range(NPRO,4):
        issueA(R_X,V_A,st,st); issueB(R_WQ,V_B,st,st); adv1()
    def wo_off(st):
        a(f's_lshl_b32 s{S_T0}, s{S_NT}, 1')
        a(f's_add_u32 s{S_T0}, s{S_T0}, {st}')
        a(f's_and_b32 s{S_T0}, s{S_T0}, 15')
        a(f's_lshl_b32 s{S_BO}, s{S_T0}, 17')
        return S_T0
    for st in range(16):
        if st<15: vm.wait(st+1)
        fstamp(a,f'w{st+1}')
        a('s_barrier')
        fstamp(a,f'B{st}')
        if st<12:
            issueA(R_X,V_A,st+4,st+4); issueB(R_WQ,V_B,st+4,st+4); adv1()
        else:
            if st==12:
                a(f'v_mov_b32 v{T0}, 0')
                vm.issue(f'buffer_load_dwordx2 v[{V_N}:{V_N+1}], v{T0}, s[{R_DBG}:{R_DBG+3}], 0 offen sc1','n')
            wo_off(st-12)
            issueB(R_WO,V_B2,st-12,('p',st-12))
    stamp(a,3)
    nonce_get(a,'l',lambda: vm.wait('n'))
    a('s_branch L_bq')
    ldq=list(vm.q)
    a.label('L_cons1')
    a.c('==== consumer P1')
    if OPT['prio']: a(f's_setprio {OPT["prio"]}')
    a(f's_and_b32 s{S_WM}, s{S_W}, 1')
    a(f's_lshr_b32 s{S_WN}, s{S_W}, 1')
    a(f'v_lshrrev_b32 v{T0}, 1, v{V_M}')
    a(f'v_xor_b32 v{T0}, v{T0}, v{V_G}')
    a(f'v_lshlrev_b32 v{T0}, 4, v{T0}')
    a(f's_mul_i32 s{S_T0}, s{S_WM}, 6144')
    a(f'v_lshl_add_u32 v{T1}, v{V_M}, 7, s{S_T0}')
    a(f'v_add_u32 v12, v{T0}, v{T1}')
    a('v_xor_b32 v13, 64, v12')
    a(f'v_add_u32 v14, {2*STAGE}, v12')
    a(f'v_add_u32 v15, {2*STAGE}, v13')
    baddr_calc(a,False)
    a(f's_cmp_ge_u32 s{S_W}, 2')
    a('s_cbranch_scc1 L_kvV')
    for i in range(4):
        a(f'v_or_b32 v{T0}, {i<<2}, v{V_G}')
        a(f'v_xor_b32 v{T0}, v{T0}, v{V_M}')
        a(f'v_lshlrev_b32 v{T0}, 4, v{T0}')
        a(f'v_lshl_add_u32 v{V_KV[i]}, v{V_G}, 8, v{T0}')
    a('s_branch L_kvdone')
    a.label('L_kvV')
    for i in range(4):
        a(f'v_or_b32 v{T0}, {(i&1)<<2}, v{V_G}')
        a(f'v_lshlrev_b32 v{T0}, 1, v{T0}')
        a(f'v_xor_b32 v{T0}, v{T0}, v{V_M}')
        a(f'v_lshlrev_b32 v{T0}, 4, v{T0}')
        a(f'v_lshl_add_u32 v{V_KV[i]}, v{V_G}, 8, v{T0}')
    a.label('L_kvdone')
    a(f's_mul_i32 s{S_KVM}, s{S_W}, 12288')
    a(f's_add_u32 s{S_KVM}, s{S_KVM}, {KVBASE}')
    a('s_waitcnt lgkmcnt(0)')
    a(f's_lshl_b32 s{S_T0}, s{S_BP}, 1')
    a(f's_add_u32 s{S_T0}, s{S_T0}, s{S_WM}')
    a(f's_lshl_b32 s{S_T0}, s{S_T0}, 5')
    a(f's_add_u32 s{S_T0}, s{S_T0}, s{S_HEAD}')
    a(f's_mul_i32 s{S_T0}, s{S_T0}, 12288')
    a(f's_cmp_ge_u32 s{S_W}, 2')
    a(f's_cselect_b32 s{S_T1}, s{S_VP}, s{S_KP}')
    a(f's_cselect_b32 s{S_T2}, s{S_VP+1}, s{S_KP+1}')
    srd(a,R_KV,S_T1,SZ_KV,S_T0)
    late_srds(a)
    a(f's_or_b32 s{S_T0}, s2, s{S_W}')
    a(f's_cmp_lg_u32 s{S_T0}, 0')
    a('s_cbranch_scc1 L_nonon')
    a(f's_memrealtime s[{S_N}:{S_N+1}]')
    a('s_waitcnt lgkmcnt(0)')
    a(f's_or_b32 s{S_N+1}, s{S_N+1}, 0x80000000')
    a(f'v_mov_b32 v{V_N}, s{S_N}')
    a(f'v_mov_b32 v{V_N+1}, s{S_N+1}')
    a(f'v_mov_b32 v{T0}, 0')
    a(f'buffer_store_dwordx2 v[{V_N}:{V_N+1}], v{T0}, s[{R_DBG}:{R_DBG+3}], 0 offen sc1')
    a.label('L_nonon')
    stamp(a,1)
    a('s_barrier')
    stamp(a,2)
    if OPT['stamps']: a('s_waitcnt lgkmcnt(0)')
    kvnt=' nt' if OPT['kvnt'] else ''
    ex={}
    k0=OPT['kvst']
    for p in range(6):
        grp=p>>1; L=[]
        L.append(f's_add_u32 m0, s{S_KVM}, {grp*4096}')
        L.append(f's_mov_b32 s{S_T3}, {grp*4096}')
        for i in (2*(p&1),2*(p&1)+1):
            off=f' offset:{i*1024}' if i else ''
            L.append(f'buffer_load_dwordx4 v{V_KV[i]}, s[{R_KV}:{R_KV+3}], s{S_T3} offen{off}{kvnt} lds')
        ex[k0+p]=L
    ex.setdefault(k0+6,[])
    ex[k0+6]+= [f'v_mov_b32 v{T0}, 0', f'buffer_load_dwordx2 v[{V_N}:{V_N+1}], v{T0}, s[{R_DBG}:{R_DBG+3}], 0 offen sc1']
    consumer_loop(a, extra2=ex)
    stamp(a,3)
    a.c('Q to LDS')
    a(f's_mul_i32 s{S_T0}, s{S_WM}, {STAGE}')
    a(f's_lshl_b32 s{S_T1}, s{S_WN}, 11')
    a(f's_add_u32 s{S_T0}, s{S_T0}, s{S_T1}')
    a(f's_add_u32 s{S_T0}, s{S_T0}, {2*STAGE}')
    a(f'v_lshrrev_b32 v1, 1, v{V_G}')
    a('v_lshlrev_b32 v1, 8, v1')
    a(f'v_and_b32 v2, 1, v{V_G}')
    a('v_lshl_add_u32 v1, v2, 3, v1')
    a(f'v_lshl_add_u32 v1, v{V_M}, 4, v1')
    a(f'v_add_u32 v1, s{S_T0}, v1')
    for t in range(4):
        for mt in range(3):
            ac=ACC+(t*3+mt)*4
            r=FA+((t*3+mt)%6)*2
            a(f'v_cvt_pk_bf16_f32 v{r}, v{ac}, v{ac+1}')
            a(f'v_cvt_pk_bf16_f32 v{r+1}, v{ac+2}, v{ac+3}')
            a(f'ds_write_b64 v1, v[{r}:{r+1}] offset:{mt*4096+(t>>1)*1024+(t&1)*512}')
    nonce_get(a,'c',lambda: a('s_waitcnt vmcnt(0)'))
    a('s_waitcnt lgkmcnt(0)')
    a.label('L_bq')
    a('s_barrier')
    stamp(a,4)
    a('s_waitcnt lgkmcnt(0)')
    a(f's_cmp_ge_u32 s{S_W}, 6')
    a('s_cbranch_scc1 L_pref')
    AV=240
    a(f's_mov_b32 s{S_L2E}, {LOG2E}')
    a(f's_cmp_ge_u32 s{S_W}, 3')
    a(f's_cselect_b32 s{S_BB}, 1, 0')
    a(f's_mul_i32 s{S_MT}, s{S_BB}, 3')
    a(f's_sub_u32 s{S_MT}, s{S_W}, s{S_MT}')
    a(f's_mul_i32 s{S_T0}, s{S_BB}, {STAGE}')
    a(f's_lshl_b32 s{S_T1}, s{S_MT}, 12')
    a(f's_add_u32 s{S_T0}, s{S_T0}, s{S_T1}')
    a(f's_add_u32 s{S_T0}, s{S_T0}, {2*STAGE}')
    vQ=AV; vK=AV+1; vV=AV+5
    a(f'v_lshl_add_u32 v{vQ}, v0, 4, s{S_T0}')
    a(f's_mul_i32 s{S_T0}, s{S_BB}, 12288')
    a(f's_add_u32 s{S_T0}, s{S_T0}, {KVBASE}')
    a(f'v_xor_b32 v{vK}, v{V_G}, v{V_M}')
    a(f'v_lshlrev_b32 v{vK}, 4, v{vK}')
    a(f'v_lshl_add_u32 v{vK}, v{V_M}, 8, v{vK}')
    a(f'v_add_u32 v{vK}, s{S_T0}, v{vK}')
    a(f'v_xor_b32 v{vK+1}, 64, v{vK}')
    a(f'v_xor_b32 v{vK+2}, 0x80, v{vK}')
    a(f'v_xor_b32 v{vK+3}, 0xc0, v{vK}')
    QF=80; KF=96; S=32; X=44; TP=56; PP=68; VF32=192; VF16=224; OA=144; OP=176
    for U in range(4): a(f'ds_read_b128 v[{QF+4*U}:{QF+4*U+3}], v{vQ} offset:{U*1024}')
    for t in range(2):
        for U in range(4): a(f'ds_read_b128 v[{KF+(t*4+U)*4}:{KF+(t*4+U)*4+3}], v{vK+U} offset:{t*4096}')
    a(f'v_lshrrev_b32 v{T0}, 2, v{V_M}')
    a(f'v_and_b32 v{T1}, 3, v0')
    a(f'v_lshl_add_u32 v{T2}, v{V_G}, 2, v{T0}')
    a(f'v_lshlrev_b32 v{T2}, 8, v{T2}')
    a(f'v_and_b32 v{T3}, 1, v{T1}')
    a(f'v_lshl_add_u32 v{T2}, v{T3}, 3, v{T2}')
    a(f'v_and_b32 v{T3}, 1, v{V_G}')
    a(f'v_lshlrev_b32 v{T3}, 3, v{T3}')
    a(f'v_lshl_add_u32 v{T3}, v{T0}, 1, v{T3}')
    a(f'v_lshrrev_b32 v{T1}, 1, v{T1}')
    a(f'v_xor_b32 v{T1}, v{T1}, v{T3}')
    a(f'v_lshl_add_u32 v{T2}, v{T1}, 4, v{T2}')
    a(f's_add_u32 s{S_T0}, s{S_T0}, 24576')
    a(f'v_add_u32 v{vV}, s{S_T0}, v{T2}')
    for t in range(1,8): a(f'v_xor_b32 v{vV+t}, {32*t}, v{vV}')
    a('s_waitcnt lgkmcnt(4)')
    for U in range(4):
        a(f'v_mfma_f32_16x16x32_bf16 v[{S}:{S+3}], v[{KF+U*4}:{KF+U*4+3}], v[{QF+4*U}:{QF+4*U+3}], '+('0' if U==0 else f'v[{S}:{S+3}]'))
    for U in range(4): a(f'ds_read_b128 v[{KF+(8+U)*4}:{KF+(8+U)*4+3}], v{vK+U} offset:8192')
    a('s_waitcnt lgkmcnt(4)')
    for U in range(4):
        a(f'v_mfma_f32_16x16x32_bf16 v[{S+4}:{S+7}], v[{KF+(4+U)*4}:{KF+(4+U)*4+3}], v[{QF+4*U}:{QF+4*U+3}], '+('0' if U==0 else f'v[{S+4}:{S+7}]'))
    a('s_waitcnt lgkmcnt(0)')
    for U in range(4):
        a(f'v_mfma_f32_16x16x32_bf16 v[{S+8}:{S+11}], v[{KF+(8+U)*4}:{KF+(8+U)*4+3}], v[{QF+4*U}:{QF+4*U+3}], '+('0' if U==0 else f'v[{S+8}:{S+11}]'))
    def vreads(ts):
        for t in ts:
            a(f'ds_read_b64_tr_b16 v[{VF32+4*t}:{VF32+4*t+1}], v{vV+t}')
            a(f'ds_read_b64_tr_b16 v[{VF32+4*t+2}:{VF32+4*t+3}], v{vV+t} offset:4096')
            a(f'ds_read_b64_tr_b16 v[{VF16+2*t}:{VF16+2*t+1}], v{vV+t} offset:8192')
    vreads(range(0,4))
    for p in range(6): a(f'v_cvt_pk_bf16_f32 v{TP+p}, v{S+2*p}, v{S+2*p+1}')
    for p in range(6):
        a(f'v_lshlrev_b32 v{X+2*p}, 16, v{TP+p}')
        a(f'v_and_b32 v{X+2*p+1}, 0xffff0000, v{TP+p}')
    for i in range(12): a(f'v_mul_f32 v{X+i}, {SCALE}, v{X+i}')
    for p in range(6): a(f'v_cvt_pk_bf16_f32 v{TP+p}, v{X+2*p}, v{X+2*p+1}')
    for p in range(6):
        a(f'v_lshlrev_b32 v{X+2*p}, 16, v{TP+p}')
        a(f'v_and_b32 v{X+2*p+1}, 0xffff0000, v{TP+p}')
    a('s_waitcnt lgkmcnt(0)')
    vreads(range(4,8))
    M=62; M2=63
    a(f'v_max3_f32 v{M}, v{X}, v{X+1}, v{X+2}')
    for i in range(3,11,2): a(f'v_max3_f32 v{M}, v{M}, v{X+i}, v{X+i+1}')
    a(f'v_max_f32 v{M}, v{M}, v{X+11}')
    for sw in ('v_permlane32_swap_b32','v_permlane16_swap_b32'):
        a(f'v_mov_b32 v{M2}, v{M}')
        a(f'{sw} v{M}, v{M2}')
        a(f'v_max_f32 v{M}, v{M}, v{M2}')
    a(f'v_mul_f32 v{M}, s{S_L2E}, v{M}')
    for i in range(12): a(f'v_fma_f32 v{X+i}, v{X+i}, s{S_L2E}, -v{M}')
    for i in range(12): a(f'v_exp_f32 v{X+i}, v{X+i}')
    SM=64
    a(f'v_add_f32 v{SM}, v{X}, v{X+1}')
    for i in range(2,12): a(f'v_add_f32 v{SM}, v{SM}, v{X+i}')
    for sw in ('v_permlane32_swap_b32','v_permlane16_swap_b32'):
        a(f'v_mov_b32 v{M2}, v{SM}')
        a(f'{sw} v{SM}, v{M2}')
        a(f'v_add_f32 v{SM}, v{SM}, v{M2}')
    a(f'v_rcp_f32 v{SM}, v{SM}')
    for i in range(12): a(f'v_mul_f32 v{X+i}, v{X+i}, v{SM}')
    for p in range(6): a(f'v_cvt_pk_bf16_f32 v{PP+p}, v{X+2*p}, v{X+2*p+1}')
    a('s_waitcnt lgkmcnt(0)')
    for t in range(8):
        a(f'v_mfma_f32_16x16x32_bf16 v[{OA+4*t}:{OA+4*t+3}], v[{VF32+4*t}:{VF32+4*t+3}], v[{PP}:{PP+3}], 0')
    for t in range(8):
        a(f'v_mfma_f32_16x16x16_bf16 v[{OA+4*t}:{OA+4*t+3}], v[{VF16+2*t}:{VF16+2*t+1}], v[{PP+4}:{PP+5}], v[{OA+4*t}:{OA+4*t+3}]')
    a(f's_lshl_b32 s{S_T0}, s{S_BP}, 5')
    a(f's_add_u32 s{S_T0}, s{S_T0}, s{S_HEAD}')
    a(f's_mul_i32 s{S_T0}, s{S_T0}, 24576')
    a(f's_mul_i32 s{S_T1}, s{S_BB}, 6144')
    a(f's_lshl_b32 s{S_T2}, s{S_MT}, 11')
    a(f's_add_u32 s{S_T1}, s{S_T1}, s{S_T2}')
    a(f's_add_u32 s{S_T0}, s{S_T0}, s{S_T1}')
    a(f's_add_u32 s{S_T2}, s{S_T0}, 12288')
    a(f'v_lshlrev_b32 v{vQ}, 4, v0')
    a(f'v_add_u32 v{vK}, s{S_T1}, v{vQ}')
    a(f'v_add_u32 v{vK+1}, {STAGE}, v{vK}')
    for u in range(4):
        for h2 in range(2):
            t=2*u+h2
            a(f'v_cvt_pk_bf16_f32 v{OP+4*u+2*h2}, v{OA+4*t}, v{OA+4*t+1}')
            a(f'v_cvt_pk_bf16_f32 v{OP+4*u+2*h2+1}, v{OA+4*t+2}, v{OA+4*t+3}')
        off=f' offset:{(u&1)*1024}' if u&1 else ''
        a(f'buffer_store_dwordx4 v[{OP+4*u}:{OP+4*u+3}], v{vQ}, s[{R_WS}:{R_WS+3}], s{S_T0 if u<2 else S_T2} offen{off} sc1')
        a(f'ds_write_b128 v{vK+(u>>1)}, v[{OP+4*u}:{OP+4*u+3}]{off}')
    a(f's_lshl_b32 s{S_T0}, s{S_KS}, 3')
    a(f's_add_u32 s{S_T0}, s{S_T0}, s{S_BP}')
    a(f's_lshl_b32 s{S_T0}, s{S_T0}, 9')
    a(f's_lshl_b32 s{S_T1}, s{S_NT}, 6')
    a(f's_add_u32 s{S_T0}, s{S_T0}, s{S_T1}')
    a(f's_lshl_b32 s{S_T1}, s{S_W}, 3')
    a(f's_add_u32 s{S_T0}, s{S_T0}, s{S_T1}')
    a(f's_add_u32 s{S_KVM}, s{S_T0}, {WS_FO}')
    a(f'v_mov_b32 v{T5}, 0')
    stamp(a,5)
    a(f's_cmp_ge_u32 s{S_W}, 4')
    a('s_cbranch_scc1 L_ld45')
    a.c('==== consumer P2')
    a(f's_mul_i32 s{S_T0}, s{S_WM}, 6144')
    a(f'v_lshl_add_u32 v12, v0, 4, s{S_T0}')
    a('v_add_u32 v13, 1024, v12')
    a(f'v_add_u32 v14, {2*STAGE}, v12')
    a(f'v_add_u32 v15, {2*STAGE}, v13')
    baddr_calc(a,True)
    a('s_waitcnt lgkmcnt(0)')
    a('s_barrier')
    stamp(a,6)
    if OPT['stamps']: a('s_waitcnt lgkmcnt(0)')
    def sig():
        a('s_waitcnt vmcnt(0)')
        flag_store(a,S_KVM,T5)
        stamp(a,7)
    consumer_loop(a, prebar={1:sig})
    stamp(a,8)
    a.c('partials')
    a(f's_lshl_b32 s{S_T3}, s{S_NT}, 3')
    a(f's_add_u32 s{S_T3}, s{S_T3}, s{S_BP}')
    a('v_lshlrev_b32 v1, 4, v0')
    for t in range(1,4):
        a(f's_add_u32 s{S_T0}, s{S_KS}, {t}')
        a(f's_and_b32 s{S_T0}, s{S_T0}, 3')
        a(f's_lshl_b32 s{S_T1}, s{S_T3}, 2')
        a(f's_add_u32 s{S_T0}, s{S_T0}, s{S_T1}')
        a(f's_lshl_b32 s{S_T0}, s{S_T0}, 2')
        a(f's_add_u32 s{S_T0}, s{S_T0}, s{S_W}')
        a(f's_mul_i32 s{S_T0}, s{S_T0}, 9216')
        a(f's_add_u32 s{S_T0}, s{S_T0}, {WS_P+(t-1)*3072}')
        for mt in range(3):
            ac=ACC+(t*3+mt)*4
            off=f' offset:{mt*1024}' if mt else ''
            a(f'buffer_store_dwordx4 v[{ac}:{ac+3}], v1, s[{R_WS}:{R_WS+3}], s{S_T0} offen{off} sc1')
    a(f's_lshl_b32 s{S_T0}, s{S_T3}, 7')
    a(f's_lshl_b32 s{S_T1}, s{S_W}, 5')
    a(f's_add_u32 s{S_T0}, s{S_T0}, s{S_T1}')
    a(f's_add_u32 s{S_T2}, s{S_T0}, {WS_FP}')
    a(f's_lshl_b32 s{S_T1}, s{S_KS}, 3')
    a(f's_add_u32 s{S_KVM}, s{S_T2}, s{S_T1}')
    a('v_and_b32 v2, 3, v0')
    a('v_lshlrev_b32 v2, 3, v2')
    a(f's_lshl_b32 s{S_T1}, s{S_T3}, 2')
    a(f's_add_u32 s{S_T1}, s{S_T1}, s{S_KS}')
    a(f's_lshl_b32 s{S_T1}, s{S_T1}, 2')
    a(f's_add_u32 s{S_T1}, s{S_T1}, s{S_W}')
    a(f's_mul_i32 s{S_T1}, s{S_T1}, 9216')
    a(f's_add_u32 s{S_AO}, s{S_T1}, {WS_P}')
    a(f's_mul_i32 s{S_T0}, s{S_BP}, 96')
    a(f's_mul_i32 s{S_T1}, s{S_WM}, 48')
    a(f's_add_u32 s{S_T0}, s{S_T0}, s{S_T1}')
    a(f's_lshl_b32 s{S_T0}, s{S_T0}, 11')
    a(f's_lshl_b32 s{S_T1}, s{S_NT}, 8')
    a(f's_add_u32 s{S_T0}, s{S_T0}, s{S_T1}')
    a(f's_lshl_b32 s{S_T1}, s{S_WN}, 7')
    a(f's_add_u32 s{S_T0}, s{S_T0}, s{S_T1}')
    a(f's_lshl_b32 s{S_T1}, s{S_KS}, 5')
    a(f's_add_u32 s{S_BO}, s{S_T0}, s{S_T1}')
    a(f'v_lshlrev_b32 v3, 11, v{V_M}')
    a(f'v_lshl_add_u32 v3, v{V_G}, 3, v3')
    a('s_waitcnt vmcnt(0)')
    flag_store(a,S_KVM,T5)
    stamp(a,9)
    poll(a,'p',2,S_T2,4)
    stamp(a,10)
    R=80
    for t in range(3):
        a(f's_add_u32 s{S_T0}, s{S_AO}, {t*3072}')
        for mt in range(3):
            r=R+(t*3+mt)*4
            off=f' offset:{mt*1024}' if mt else ''
            a(f'buffer_load_dwordx4 v[{r}:{r+3}], v1, s[{R_WS}:{R_WS+3}], s{S_T0} offen{off} sc1')
    for mt in range(3):
        ac=ACC+mt*4
        if mt==0: a('s_waitcnt vmcnt(0)')
        for e in range(4):
            a(f'v_add_f32 v{ac+e}, v{ac+e}, v{R+(0*3+mt)*4+e}')
            a(f'v_add_f32 v{ac+e}, v{ac+e}, v{R+(1*3+mt)*4+e}')
            a(f'v_add_f32 v{ac+e}, v{ac+e}, v{R+(2*3+mt)*4+e}')
        a(f'v_cvt_pk_bf16_f32 v{ac}, v{ac}, v{ac+1}')
        a(f'v_cvt_pk_bf16_f32 v{ac+1}, v{ac+2}, v{ac+3}')
        a(f'buffer_store_dwordx2 v[{ac}:{ac+1}], v3, s[{R_OUT}:{R_OUT+3}], s{S_BO} offen')
        if mt<2: a(f's_add_u32 s{S_BO}, s{S_BO}, {16*2048}')
    if OPT['stamps']:
        a('s_waitcnt vmcnt(0)')
        stamp(a,11)
        a(f's_cmp_eq_u32 s{S_W}, 0')
        a('s_cbranch_scc0 L_end')
        stamp_flush(a,'c',0)
    a('s_endpgm')
    a.label('L_ld45')
    a('s_waitcnt vmcnt(0) lgkmcnt(0)')
    flag_store(a,S_KVM,T5)
    a('s_branch L_ldbx')
    a.label('L_pref')
    a(f's_lshl_b32 s{S_T0}, s{S_NT}, 7')
    a(f's_mul_i32 s{S_T1}, s{S_BP}, 96')
    a(f's_add_u32 s{S_T0}, s{S_T0}, s{S_T1}')
    a(f's_sub_u32 s{S_T1}, s{S_W}, 6')
    a(f's_mul_i32 s{S_T1}, s{S_T1}, 48')
    a(f's_add_u32 s{S_T0}, s{S_T0}, s{S_T1}')
    a(f's_add_u32 s{S_T0}, s{S_T0}, 256')
    a(f'v_lshlrev_b32 v{T0}, 11, v{V_G}')
    a(f'v_lshl_add_u32 v{T0}, v{V_M}, 4, v{T0}')
    for k in range(12):
        a(f's_and_b32 s{S_T1}, s{S_T0}, 1023')
        a(f's_lshl_b32 s{S_T1}, s{S_T1}, 11')
        a(f'buffer_load_dwordx4 v[{V_JUNK}:{V_JUNK+3}], v{T0}, s[{R_WO}:{R_WO+3}], s{S_T1} offen')
        if k<11: a(f's_add_u32 s{S_T0}, s{S_T0}, 4')
    a('s_waitcnt vmcnt(12)')
    a.label('L_ldbx')
    a.c('==== loader P2')
    vm=VM(a)
    a(f's_sub_u32 s{S_LI}, s{S_W}, 4')
    a(f'v_lshlrev_b32 v1, 4, v0')
    a(f's_mul_i32 s{S_T0}, s{S_LI}, 3072')
    a(f'v_add_u32 v1, s{S_T0}, v1')
    a(f's_lshl_b32 s{S_T0}, s{S_BP}, 5')
    a(f's_lshl_b32 s{S_T1}, s{S_KS}, 3')
    a(f's_add_u32 s{S_T0}, s{S_T0}, s{S_T1}')
    a(f's_mul_i32 s{S_T3}, s{S_T0}, 24576')
    a(f'v_lshrrev_b32 v2, 3, v0')
    a(f'v_and_b32 v3, 7, v0')
    a(f'v_min_u32 v3, 5, v3')
    a(f'v_lshlrev_b32 v3, 3, v3')
    a(f'v_lshl_add_u32 v2, v2, 6, v3')
    a(f's_lshl_b32 s{S_T0}, s{S_KS}, 3')
    a(f's_add_u32 s{S_T0}, s{S_T0}, s{S_BP}')
    a(f's_lshl_b32 s{S_T0}, s{S_T0}, 9')
    a(f's_add_u32 s{S_KVM}, s{S_T0}, {WS_FO}')
    fstamp(a,'preBX')
    a('s_barrier')
    stamp(a,6)
    fstamp(a,'BX')
    a('s_barrier')
    fstamp(a,'2B0')
    poll(a,'o',2,S_KVM,12)
    stamp(a,7)
    fstamp(a,'poll')
    def offs(st):
        a(f's_lshl_b32 s{S_T0}, s{S_NT}, 1')
        a(f's_add_u32 s{S_T0}, s{S_T0}, {st}')
        a(f's_and_b32 s{S_T0}, s{S_T0}, 15')
        a(f's_lshl_b32 s{S_BO}, s{S_T0}, 17')
        a(f's_mul_i32 s{S_AO}, s{S_T0}, 12288')
        a(f's_add_u32 s{S_AO}, s{S_AO}, s{S_T3}')
    VA2=[1,1,1]
    offs(2); issueA(R_WS,VA2,2,2,' sc1')
    offs(3); issueA(R_WS,VA2,3,3,' sc1')
    offs(4); issueA(R_WS,VA2,4,4,' sc1'); issueB(R_WO,V_B2,4,4)
    for st in range(1,16):
        if st<15: vm.wait(st+1)
        fstamp(a,f'2w{st+1}')
        a('s_barrier')
        fstamp(a,f'2B{st}')
        if st==1: stamp(a,8)
        if st+4<16:
            offs(st+4); issueA(R_WS,VA2,st+4,st+4,' sc1'); issueB(R_WO,V_B2,st+4,st+4)
    fstamp_flush(a)
    if OPT['stamps']:
        stamp(a,9)
        a(f's_cmp_eq_u32 s{S_W}, 4')
        a('s_cbranch_scc0 L_end')
        stamp_flush(a,'l',1)
    a.label('L_end')
    a('s_endpgm')
    return a

def kd(name, vg):
    return f""".p2align 6
.amdhsa_kernel {name}
  .amdhsa_next_free_vgpr {vg}
  .amdhsa_next_free_sgpr 100
  .amdhsa_accum_offset {vg}
  .amdhsa_group_segment_fixed_size 0
  .amdhsa_kernarg_size 64
  .amdhsa_user_sgpr_count 2
  .amdhsa_user_sgpr_kernarg_segment_ptr 1
  .amdhsa_system_sgpr_workgroup_id_x 1
.end_amdhsa_kernel
"""

def build():
    ref=open('cdna_kernels/'+NAME+'.s.ref').read().split('\n')
    hdr=[l for l in ref if l.startswith(';') and '@launch' not in l and 'Override' not in l and 'grid=ceil' not in l]
    out='\n'.join(hdr[:9])+'\n'
    out+='; @launch grid=(256,1,1) block=(512,1,1) lds=163840\n'
    out+='.amdgcn_target "amdgcn-amd-amdhsa--gfx950"\n.text\n'
    out+=build_kernel().text()
    out+='.section .rodata,"a"\n'
    out+=kd(K,256)
    return out

if __name__=='__main__':
    dst='cdna_kernels/'+NAME+'.s'
    for x in sys.argv[1:]:
        if '=' in x:
            k,v=x.split('='); OPT[k]=int(v)
        else: dst=x
    open(dst,'w').write(build())
    if '_names' in OPT: open(dst+'.names','w').write('\n'.join(OPT['_names'])+'\n')
    print('wrote',dst)
```

```python
import sys
from asmlib import Asm

NAME='standalone__mha_block_cached__near_ridge'
K=NAME+'_kernel'
STAGE=28672
KVBASE=4*STAGE
WS_O=0
WS_P=8<<20
WS_FO=20<<20
WS_FP=(20<<20)+65536
SZ_WS=21<<20
SZ_X=768*2048; SZ_W=1024*8192; SZ_KV=16*32*12288; SZ_OUT=768*2048
SCALE='0x3db504f3'; LOG2E='0x3fb8aa3b'
SPIN=1<<15

OPT=dict(stamps=0, kvnt=1, rot=1, kvst=0, prio=0, npro=3, dbgwg=0)

V_A=[1,2,3]; V_B=[4,5,6,7]; V_B2=[8,9,10,11]
V_KV=[8,9,10,11]
V_AADDR=[[12,13],[14,15]]; V_BADDR=[[16,17,18,19],[20,21,22,23]]
V_G=24; V_M=25
T0=26; T1=27; T2=28; T3=29; T4=30; T5=31
ACC=32; FA=80; FB=104
V_N=140
V_JUNK=252
S_XP=4; S_KP=6; S_VP=8; S_WQP=10; S_WOP=12; S_OUTP=14; S_DBGP=16; S_WSP=18
R_X=20; R_WQ=24; R_KV=28; R_WS=32; R_WO=84; R_OUT=88; R_DBG=92
S_W=36; S_HEAD=37; S_BP=38; S_KS=39; S_NT=40
S_AO=41; S_BO=42; S_M0A=43; S_M0B=44
S_T0=45; S_T1=46; S_T2=47; S_KVM=48; S_T3=49; S_WM=50; S_WN=51
S_BB=52; S_MT=53; S_CUR=54; S_CNT=55; S_L2E=56; S_LI=57
S_N=58
S_ST=60
NST=12

def srd(a, d, base, size, add=None):
    if add is None:
        a(f's_mov_b32 s{d}, s{base}')
        a(f's_mov_b32 s{d+1}, s{base+1}')
        a(f's_mov_b32 s{d+2}, {size}')
    else:
        a(f's_add_u32 s{d}, s{base}, s{add}')
        a(f's_addc_u32 s{d+1}, s{base+1}, 0')
        a(f's_sub_u32 s{d+2}, {size}, s{add}')
    a(f's_mov_b32 s{d+3}, 0x20000')

def stamp(a,j):
    if OPT['stamps']: a(f's_memrealtime s[{S_ST+2*j}:{S_ST+2*j+1}]')
def stamp_flush(a,tag,li):
    if not OPT['stamps']: return
    a('s_waitcnt lgkmcnt(0)')
    a(f's_mov_b32 s{S_T0}, {(64<<20)+li*256*NST*8}')
    a(f's_mul_i32 s{S_T1}, s2, {NST*8}')
    a(f's_add_u32 s{S_T0}, s{S_T0}, s{S_T1}')
    srd(a,R_X,S_WSP,256<<20,S_T0)
    a('v_mov_b32 v2, 0')
    for j in range(NST):
        a(f'v_mov_b32 v4, s{S_ST+2*j}')
        a(f'v_mov_b32 v5, s{S_ST+2*j+1}')
        a(f'buffer_store_dwordx2 v[4:5], v2, s[{R_X}:{R_X+3}], 0 offen offset:{8*j}')
        a('s_nop 1')

FINE=[]
V_FS=200
def fstamp(a,name):
    if OPT['stamps']!=2: return
    i=len(FINE)
    if i>0:
        a('s_waitcnt lgkmcnt(0)')
        a(f'v_writelane_b32 v{V_FS+((i-1)>>6)}, s96, {(i-1)&63}')
    a('s_memrealtime s[96:97]')
    FINE.append(name)
def fstamp_flush(a):
    if OPT['stamps']!=2: return
    i=len(FINE)
    a('s_waitcnt lgkmcnt(0)')
    a(f'v_writelane_b32 v{V_FS+((i-1)>>6)}, s96, {(i-1)&63}')
    a(f's_cmp_eq_u32 s{S_W}, 6')
    a('s_cbranch_scc0 L_nofs')
    a(f's_mov_b32 s{S_T0}, {(65<<20)}')
    a(f's_lshl_b32 s{S_T1}, s2, 9')
    a(f's_add_u32 s{S_T0}, s{S_T0}, s{S_T1}')
    srd(a,R_X,S_WSP,256<<20,S_T0)
    a('v_lshlrev_b32 v2, 2, v0')
    a(f'buffer_store_dword v{V_FS}, v2, s[{R_X}:{R_X+3}], 0 offen')
    a(f'buffer_store_dword v{V_FS+1}, v2, s[{R_X}:{R_X+3}], 0 offen offset:256')
    a.label('L_nofs')
    OPT['_names']=list(FINE)

class VM:
    def __init__(s,a): s.a=a; s.q=[]
    def issue(s,text,tag):
        s.a(text); s.q.append(tag)
    def note(s,tag): s.q.append(tag)
    def wait(s,tag):
        idx=max(i for i,t in enumerate(s.q) if t==tag)
        n=len(s.q)-1-idx
        s.a(f's_waitcnt vmcnt({n})')
        del s.q[:idx+1]
    def waitall(s):
        s.a('s_waitcnt vmcnt(0)'); s.q=[]

def frag_reads(st,ks):
    slot=st%4; se=slot>>1; so=(slot&1)*STAGE
    L=[]
    for mt in range(3):
        r=FA+(ks*3+mt)*4
        L.append(f'ds_read_b128 v[{r}:{r+3}], v{V_AADDR[se][ks]} offset:{so+mt*2048}')
    for t in range(4):
        r=FB+(ks*4+t)*4
        for hh in range(2):
            L.append(f'ds_read_b64_tr_b16 v[{r+2*hh}:{r+2*hh+1}], v{V_BADDR[se][t]} offset:{so+12288+ks*8192+hh*1024}')
    return L
def mfmas(ks, first):
    L=[]
    for t in range(4):
        for mt in range(3):
            ac=ACC+(t*3+mt)*4
            fa=FA+(ks*3+mt)*4; fb=FB+(ks*4+t)*4
            c='0' if first else f'v[{ac}:{ac+3}]'
            L.append(f'v_mfma_f32_16x16x32_bf16 v[{ac}:{ac+3}], v[{fb}:{fb+3}], v[{fa}:{fa+3}], {c}')
    return L
def interleave(a, M, others):
    n=len(M); k=len(others); j=0
    for i,m in enumerate(M):
        a(m)
        tgt=min(k,((i+1)*k+n-1)//n) if i<n-1 else k
        while j<tgt:
            a(others[j]); j+=1

def consumer_loop(a, extra2=None, prebar=None, lastreads=False):
    for x in frag_reads(0,0): a(x)
    for st in range(16):
        a.c(f'---- stage {st}')
        a('s_waitcnt lgkmcnt(0)')
        interleave(a, mfmas(0, st==0), frag_reads(st,1))
        if prebar and st in prebar: prebar[st]()
        a('s_waitcnt lgkmcnt(0)')
        a('s_barrier')
        oth=frag_reads(st+1,0) if st<15 else []
        if extra2 and st in extra2:
            ex=extra2[st]
            oth=oth+ex
        interleave(a, mfmas(1,False), oth)

def baddr_calc(a, rot):
    a(f'v_lshrrev_b32 v{T0}, 2, v{V_M}')
    a(f'v_and_b32 v{T1}, 3, v0')
    a(f'v_lshl_add_u32 v{T2}, v{V_G}, 3, v{T0}')
    a(f'v_lshlrev_b32 v{T2}, 8, v{T2}')
    a(f'v_and_b32 v{T3}, 1, v{T1}')
    a(f'v_lshl_add_u32 v{T2}, v{T3}, 3, v{T2}')
    a(f'v_and_b32 v{T3}, 1, v{V_G}')
    a(f'v_lshlrev_b32 v{T3}, 3, v{T3}')
    a(f'v_lshl_add_u32 v{T3}, v{T0}, 1, v{T3}')
    a(f'v_lshrrev_b32 v{T1}, 1, v{T1}')
    a(f's_lshl_b32 s{S_T0}, s{S_WN}, 3')
    a(f'v_or_b32 v{T1}, s{S_T0}, v{T1}')
    for t in range(4):
        if rot:
            a(f's_add_u32 s{S_T0}, s{S_KS}, {t}')
            a(f's_and_b32 s{S_T0}, s{S_T0}, 3')
            a(f's_lshl_b32 s{S_T0}, s{S_T0}, 1')
            a(f'v_or_b32 v{T0}, s{S_T0}, v{T1}')
        else:
            a(f'v_or_b32 v{T0}, {2*t}, v{T1}')
        a(f'v_xor_b32 v{T0}, v{T0}, v{T3}')
        a(f'v_lshl_add_u32 v{V_BADDR[0][t]}, v{T0}, 4, v{T2}')
        a(f'v_add_u32 v{V_BADDR[1][t]}, {2*STAGE}, v{V_BADDR[0][t]}')

def late_srds(a):
    srd(a,R_WS,S_WSP,SZ_WS,None)
    srd(a,R_DBG,S_DBGP,256,None)
    srd(a,R_OUT,S_OUTP,SZ_OUT,None)
    a(f's_lshl_b32 s{S_T0}, s{S_KS}, 21')
    a(f's_lshl_b32 s{S_T1}, s{S_NT}, 8')
    a(f's_add_u32 s{S_T0}, s{S_T0}, s{S_T1}')
    srd(a,R_WO,S_WOP,SZ_W,S_T0)

def nonce_get(a, tag, vm_wait):
    vm_wait()
    a(f's_mov_b32 s{S_CNT}, {SPIN}')
    a.label(f'Ln_{tag}')
    a(f'v_readfirstlane_b32 s{S_N}, v{V_N}')
    a(f'v_readfirstlane_b32 s{S_N+1}, v{V_N+1}')
    a(f's_cmp_lg_u32 s{S_N+1}, 0')
    a(f's_cbranch_scc1 Lnd_{tag}')
    a(f's_sub_u32 s{S_CNT}, s{S_CNT}, 1')
    a(f's_cmp_eq_u32 s{S_CNT}, 0')
    a(f's_cbranch_scc1 Lnd_{tag}')
    a('s_sleep 2')
    a(f'v_mov_b32 v{T0}, 0')
    a(f'buffer_load_dwordx2 v[{V_N}:{V_N+1}], v{T0}, s[{R_DBG}:{R_DBG+3}], 0 offen sc1')
    a('s_waitcnt vmcnt(0)')
    a(f's_branch Ln_{tag}')
    a.label(f'Lnd_{tag}')

def poll(a, tag, voff, soff, vd):
    a(f's_mov_b32 s{S_CNT}, {SPIN}')
    a.label(f'Lp_{tag}')
    a(f'buffer_load_dwordx2 v[{vd}:{vd+1}], v{voff}, s[{R_WS}:{R_WS+3}], s{soff} offen sc1')
    a('s_waitcnt vmcnt(0)')
    a(f'v_cmp_ne_u64 vcc, s[{S_N}:{S_N+1}], v[{vd}:{vd+1}]')
    a(f's_cbranch_vccz Lpd_{tag}')
    a(f's_sub_u32 s{S_CNT}, s{S_CNT}, 1')
    a(f's_cmp_eq_u32 s{S_CNT}, 0')
    a(f's_cbranch_scc0 Lp_{tag}')
    a.label(f'Lpd_{tag}')

def flag_store(a, soff_reg, voff):
    a(f'v_mov_b32 v{V_N}, s{S_N}')
    a(f'v_mov_b32 v{V_N+1}, s{S_N+1}')
    a(f'buffer_store_dwordx2 v[{V_N}:{V_N+1}], v{voff}, s[{R_WS}:{R_WS+3}], s{soff_reg} offen sc1')

def build_kernel():
    a=Asm()
    a.raw(f'.globl {K}\n.p2align 8\n.type {K},@function\n{K}:')
    a('s_cmp_ge_u32 s2, 256')
    a('s_cbranch_scc1 L_end')
    a('s_load_dwordx16 s[4:19], s[0:1], 0')
    for j in range(NST): stamp(a,j)
    a('v_lshrrev_b32 v1, 6, v0')
    a('v_and_b32 v0, 63, v0')
    a(f'v_readfirstlane_b32 s{S_W}, v1')
    a(f'v_lshrrev_b32 v{V_G}, 4, v0')
    a(f'v_and_b32 v{V_M}, 15, v0')
    a(f's_and_b32 s{S_T0}, s2, 7')
    a(f's_lshr_b32 s{S_BP}, s2, 3')
    a(f's_and_b32 s{S_T1}, s{S_BP}, 3')
    a(f's_lshl_b32 s{S_HEAD}, s{S_T0}, 2')
    a(f's_add_u32 s{S_HEAD}, s{S_HEAD}, s{S_T1}')
    a(f's_lshr_b32 s{S_BP}, s{S_BP}, 2')
    a(f's_lshr_b32 s{S_KS}, s{S_HEAD}, 3')
    a(f's_and_b32 s{S_NT}, s{S_HEAD}, 7')
    a(f's_cmp_ge_u32 s{S_W}, 4')
    a('s_cbranch_scc0 L_cons1')
    a.c('==== loader P1')
    vm=VM(a)
    a(f's_sub_u32 s{S_LI}, s{S_W}, 4')
    if OPT['rot']:
        a(f's_lshl_b32 s{S_CUR}, s{S_T1}, 1')
        a(f's_add_u32 s{S_CUR}, s{S_CUR}, s{S_BP}')
        a(f's_lshl_b32 s{S_CUR}, s{S_CUR}, 1')
        a(f's_and_b32 s{S_CUR}, s{S_CUR}, 15')
    else:
        a(f's_mov_b32 s{S_CUR}, 0')
    a(f'v_lshrrev_b32 v{T4}, 3, v0')
    a(f'v_and_b32 v{T5}, 7, v0')
    a(f's_mul_i32 s{S_T3}, s{S_LI}, 3')
    for ii in range(3):
        a(f's_add_u32 s{S_T0}, s{S_T3}, {ii}')
        a(f's_and_b32 s{S_T1}, s{S_T0}, 1')
        a(f's_lshl_b32 s{S_T1}, s{S_T1}, 2')
        a(f'v_or_b32 v{T0}, s{S_T1}, v{V_G}')
        a(f'v_xor_b32 v{T0}, v{T0}, v{T5}')
        a(f'v_lshlrev_b32 v{T0}, 4, v{T0}')
        a(f's_lshl_b32 s{S_T0}, s{S_T0}, 14')
        if ii: a(f's_sub_u32 s{S_T0}, s{S_T0}, {ii*1024}')
        a(f'v_lshlrev_b32 v{T1}, 11, v{T4}')
        a(f'v_add3_u32 v{V_A[ii]}, v{T0}, v{T1}, s{S_T0}')
    for hh in range(2):
        a(f'v_or_b32 v{T2+hh}, {hh<<2}, v{V_G}')
        a(f'v_lshlrev_b32 v{T2+hh}, 1, v{T2+hh}')
        a(f'v_xor_b32 v{T2+hh}, v{T2+hh}, v{V_M}')
        a(f'v_lshlrev_b32 v{T2+hh}, 4, v{T2+hh}')
    a(f'v_lshlrev_b32 v{T1}, 13, v{V_G}')
    for ii in range(4):
        a(f's_lshl_b32 s{S_T0}, s{S_LI}, 17')
        if ii: a(f's_add_u32 s{S_T0}, s{S_T0}, {ii*4*8192-ii*1024}')
        a(f'v_add3_u32 v{V_B[ii]}, v{T2+(ii>>1)}, v{T1}, s{S_T0}')
    a(f's_mul_i32 s{S_M0A}, s{S_LI}, 3072')
    a(f's_lshl_b32 s{S_M0B}, s{S_LI}, 12')
    a(f's_add_u32 s{S_M0B}, s{S_M0B}, 12288')
    a(f's_lshl_b32 s{S_AO}, s{S_CUR}, 7')
    a(f's_lshl_b32 s{S_BO}, s{S_CUR}, 19')
    a('s_waitcnt lgkmcnt(0)')
    a(f's_mul_i32 s{S_T0}, s{S_BP}, 196608')
    srd(a,R_X,S_XP,SZ_X,S_T0)
    a(f's_lshl_b32 s{S_T0}, s{S_HEAD}, 8')
    srd(a,R_WQ,S_WQP,SZ_W,S_T0)
    def issueA(rs,va,st,tag,aux=''):
        slot=st%4
        a(f's_add_u32 m0, s{S_M0A}, {slot*STAGE}')
        for ii in range(3):
            off=f' offset:{ii*1024}' if ii else ''
            vm.issue(f'buffer_load_dwordx4 v{va[ii]}, s[{rs}:{rs+3}], s{S_AO} offen{off}{aux} lds',tag)
    def issueB(rs,vb,st,tag,aux=''):
        slot=st%4
        a(f's_add_u32 m0, s{S_M0B}, {slot*STAGE}')
        for ii in range(4):
            off=f' offset:{ii*1024}' if ii else ''
            vm.issue(f'buffer_load_dwordx4 v{vb[ii]}, s[{rs}:{rs+3}], s{S_BO} offen{off}{aux} lds',tag)
    def adv1():
        a(f's_add_u32 s{S_AO}, s{S_AO}, 128')
        a(f's_and_b32 s{S_AO}, s{S_AO}, 2047')
        a(f's_lshl_b32 s{S_BO}, s{S_AO}, 12')
    fstamp(a,'start')
    NPRO=OPT['npro']
    for st in range(NPRO):
        issueA(R_X,V_A,st,st); issueB(R_WQ,V_B,st,st); adv1()
        fstamp(a,f'pro{st}')
    stamp(a,1)
    late_srds(a)
    a(f'v_lshlrev_b32 v{T1}, 11, v{V_G}')
    a(f's_lshr_b32 s{S_T1}, s{S_LI}, 1')
    a(f's_lshl_b32 s{S_T1}, s{S_T1}, 5')
    a(f's_and_b32 s{S_T2}, s{S_LI}, 1')
    a(f's_lshl_b32 s{S_T2}, s{S_T2}, 3')
    a(f's_add_u32 s{S_T1}, s{S_T1}, s{S_T2}')
    a(f's_lshl_b32 s{S_T1}, s{S_T1}, 11')
    for ii in range(4):
        c=(16*(ii&1)+4*(ii>>1))*2048-ii*1024
        a(f's_add_u32 s{S_T0}, s{S_T1}, {c}' if c>=0 else f's_sub_u32 s{S_T0}, s{S_T1}, {-c}')
        a(f'v_add3_u32 v{V_B2[ii]}, v{T2+(ii>>1)}, v{T1}, s{S_T0}')
    vm.wait(0)
    fstamp(a,'w0')
    a('s_barrier')
    stamp(a,2)
    fstamp(a,'B-1')
    for st in range(NPRO,4):
        issueA(R_X,V_A,st,st); issueB(R_WQ,V_B,st,st); adv1()
    def wo_off(st):
        a(f's_lshl_b32 s{S_T0}, s{S_NT}, 1')
        a(f's_add_u32 s{S_T0}, s{S_T0}, {st}')
        a(f's_and_b32 s{S_T0}, s{S_T0}, 15')
        a(f's_lshl_b32 s{S_BO}, s{S_T0}, 17')
        return S_T0
    for st in range(16):
        if st<15: vm.wait(st+1)
        fstamp(a,f'w{st+1}')
        a('s_barrier')
        fstamp(a,f'B{st}')
        if st<12:
            issueA(R_X,V_A,st+4,st+4); issueB(R_WQ,V_B,st+4,st+4); adv1()
        else:
            if st==12:
                a(f'v_mov_b32 v{T0}, 0')
                vm.issue(f'buffer_load_dwordx2 v[{V_N}:{V_N+1}], v{T0}, s[{R_DBG}:{R_DBG+3}], 0 offen sc1','n')
            wo_off(st-12)
            issueB(R_WO,V_B2,st-12,('p',st-12))
    stamp(a,3)
    nonce_get(a,'l',lambda: vm.wait('n'))
    a('s_branch L_bq')
    ldq=list(vm.q)
    a.label('L_cons1')
    a.c('==== consumer P1')
    if OPT['prio']: a(f's_setprio {OPT["prio"]}')
    a(f's_and_b32 s{S_WM}, s{S_W}, 1')
    a(f's_lshr_b32 s{S_WN}, s{S_W}, 1')
    a(f'v_lshrrev_b32 v{T0}, 1, v{V_M}')
    a(f'v_xor_b32 v{T0}, v{T0}, v{V_G}')
    a(f'v_lshlrev_b32 v{T0}, 4, v{T0}')
    a(f's_mul_i32 s{S_T0}, s{S_WM}, 6144')
    a(f'v_lshl_add_u32 v{T1}, v{V_M}, 7, s{S_T0}')
    a(f'v_add_u32 v12, v{T0}, v{T1}')
    a('v_xor_b32 v13, 64, v12')
    a(f'v_add_u32 v14, {2*STAGE}, v12')
    a(f'v_add_u32 v15, {2*STAGE}, v13')
    baddr_calc(a,False)
    a(f's_cmp_ge_u32 s{S_W}, 2')
    a('s_cbranch_scc1 L_kvV')
    for i in range(4):
        a(f'v_or_b32 v{T0}, {i<<2}, v{V_G}')
        a(f'v_xor_b32 v{T0}, v{T0}, v{V_M}')
        a(f'v_lshlrev_b32 v{T0}, 4, v{T0}')
        a(f'v_lshl_add_u32 v{V_KV[i]}, v{V_G}, 8, v{T0}')
    a('s_branch L_kvdone')
    a.label('L_kvV')
    for i in range(4):
        a(f'v_or_b32 v{T0}, {(i&1)<<2}, v{V_G}')
        a(f'v_lshlrev_b32 v{T0}, 1, v{T0}')
        a(f'v_xor_b32 v{T0}, v{T0}, v{V_M}')
        a(f'v_lshlrev_b32 v{T0}, 4, v{T0}')
        a(f'v_lshl_add_u32 v{V_KV[i]}, v{V_G}, 8, v{T0}')
    a.label('L_kvdone')
    a(f's_mul_i32 s{S_KVM}, s{S_W}, 12288')
    a(f's_add_u32 s{S_KVM}, s{S_KVM}, {KVBASE}')
    a('s_waitcnt lgkmcnt(0)')
    a(f's_lshl_b32 s{S_T0}, s{S_BP}, 1')
    a(f's_add_u32 s{S_T0}, s{S_T0}, s{S_WM}')
    a(f's_lshl_b32 s{S_T0}, s{S_T0}, 5')
    a(f's_add_u32 s{S_T0}, s{S_T0}, s{S_HEAD}')
    a(f's_mul_i32 s{S_T0}, s{S_T0}, 12288')
    a(f's_cmp_ge_u32 s{S_W}, 2')
    a(f's_cselect_b32 s{S_T1}, s{S_VP}, s{S_KP}')
    a(f's_cselect_b32 s{S_T2}, s{S_VP+1}, s{S_KP+1}')
    srd(a,R_KV,S_T1,SZ_KV,S_T0)
    late_srds(a)
    a(f's_or_b32 s{S_T0}, s2, s{S_W}')
    a(f's_cmp_lg_u32 s{S_T0}, 0')
    a('s_cbranch_scc1 L_nonon')
    a(f's_memrealtime s[{S_N}:{S_N+1}]')
    a('s_waitcnt lgkmcnt(0)')
    a(f's_or_b32 s{S_N+1}, s{S_N+1}, 0x80000000')
    a(f'v_mov_b32 v{V_N}, s{S_N}')
    a(f'v_mov_b32 v{V_N+1}, s{S_N+1}')
    a(f'v_mov_b32 v{T0}, 0')
    a(f'buffer_store_dwordx2 v[{V_N}:{V_N+1}], v{T0}, s[{R_DBG}:{R_DBG+3}], 0 offen sc1')
    a.label('L_nonon')
    stamp(a,1)
    a('s_barrier')
    stamp(a,2)
    if OPT['stamps']: a('s_waitcnt lgkmcnt(0)')
    kvnt=' nt' if OPT['kvnt'] else ''
    ex={}
    k0=OPT['kvst']
    for p in range(6):
        grp=p>>1; L=[]
        L.append(f's_add_u32 m0, s{S_KVM}, {grp*4096}')
        L.append(f's_mov_b32 s{S_T3}, {grp*4096}')
        for i in (2*(p&1),2*(p&1)+1):
            off=f' offset:{i*1024}' if i else ''
            L.append(f'buffer_load_dwordx4 v{V_KV[i]}, s[{R_KV}:{R_KV+3}], s{S_T3} offen{off}{kvnt} lds')
        ex[k0+p]=L
    ex.setdefault(k0+6,[])
    ex[k0+6]+= [f'v_mov_b32 v{T0}, 0', f'buffer_load_dwordx2 v[{V_N}:{V_N+1}], v{T0}, s[{R_DBG}:{R_DBG+3}], 0 offen sc1']
    consumer_loop(a, extra2=ex)
    stamp(a,3)
    a.c('Q to LDS')
    a(f's_mul_i32 s{S_T0}, s{S_WM}, {STAGE}')
    a(f's_lshl_b32 s{S_T1}, s{S_WN}, 11')
    a(f's_add_u32 s{S_T0}, s{S_T0}, s{S_T1}')
    a(f's_add_u32 s{S_T0}, s{S_T0}, {2*STAGE}')
    a(f'v_lshrrev_b32 v1, 1, v{V_G}')
    a('v_lshlrev_b32 v1, 8, v1')
    a(f'v_and_b32 v2, 1, v{V_G}')
    a('v_lshl_add_u32 v1, v2, 3, v1')
    a(f'v_lshl_add_u32 v1, v{V_M}, 4, v1')
    a(f'v_add_u32 v1, s{S_T0}, v1')
    for t in range(4):
        for mt in range(3):
            ac=ACC+(t*3+mt)*4
            r=FA+((t*3+mt)%6)*2
            a(f'v_cvt_pk_bf16_f32 v{r}, v{ac}, v{ac+1}')
            a(f'v_cvt_pk_bf16_f32 v{r+1}, v{ac+2}, v{ac+3}')
            a(f'ds_write_b64 v1, v[{r}:{r+1}] offset:{mt*4096+(t>>1)*1024+(t&1)*512}')
    nonce_get(a,'c',lambda: a('s_waitcnt vmcnt(0)'))
    a('s_waitcnt lgkmcnt(0)')
    a.label('L_bq')
    a('s_barrier')
    stamp(a,4)
    a('s_waitcnt lgkmcnt(0)')
    a(f's_cmp_ge_u32 s{S_W}, 6')
    a('s_cbranch_scc1 L_pref')
    AV=240
    a(f's_mov_b32 s{S_L2E}, {LOG2E}')
    a(f's_cmp_ge_u32 s{S_W}, 3')
    a(f's_cselect_b32 s{S_BB}, 1, 0')
    a(f's_mul_i32 s{S_MT}, s{S_BB}, 3')
    a(f's_sub_u32 s{S_MT}, s{S_W}, s{S_MT}')
    a(f's_mul_i32 s{S_T0}, s{S_BB}, {STAGE}')
    a(f's_lshl_b32 s{S_T1}, s{S_MT}, 12')
    a(f's_add_u32 s{S_T0}, s{S_T0}, s{S_T1}')
    a(f's_add_u32 s{S_T0}, s{S_T0}, {2*STAGE}')
    vQ=AV; vK=AV+1; vV=AV+5
    a(f'v_lshl_add_u32 v{vQ}, v0, 4, s{S_T0}')
    a(f's_mul_i32 s{S_T0}, s{S_BB}, 12288')
    a(f's_add_u32 s{S_T0}, s{S_T0}, {KVBASE}')
    a(f'v_xor_b32 v{vK}, v{V_G}, v{V_M}')
    a(f'v_lshlrev_b32 v{vK}, 4, v{vK}')
    a(f'v_lshl_add_u32 v{vK}, v{V_M}, 8, v{vK}')
    a(f'v_add_u32 v{vK}, s{S_T0}, v{vK}')
    a(f'v_xor_b32 v{vK+1}, 64, v{vK}')
    a(f'v_xor_b32 v{vK+2}, 0x80, v{vK}')
    a(f'v_xor_b32 v{vK+3}, 0xc0, v{vK}')
    QF=80; KF=96; S=32; X=44; TP=56; PP=68; VF32=192; VF16=224; OA=144; OP=176
    for U in range(4): a(f'ds_read_b128 v[{QF+4*U}:{QF+4*U+3}], v{vQ} offset:{U*1024}')
    for t in range(2):
        for U in range(4): a(f'ds_read_b128 v[{KF+(t*4+U)*4}:{KF+(t*4+U)*4+3}], v{vK+U} offset:{t*4096}')
    a(f'v_lshrrev_b32 v{T0}, 2, v{V_M}')
    a(f'v_and_b32 v{T1}, 3, v0')
    a(f'v_lshl_add_u32 v{T2}, v{V_G}, 2, v{T0}')
    a(f'v_lshlrev_b32 v{T2}, 8, v{T2}')
    a(f'v_and_b32 v{T3}, 1, v{T1}')
    a(f'v_lshl_add_u32 v{T2}, v{T3}, 3, v{T2}')
    a(f'v_and_b32 v{T3}, 1, v{V_G}')
    a(f'v_lshlrev_b32 v{T3}, 3, v{T3}')
    a(f'v_lshl_add_u32 v{T3}, v{T0}, 1, v{T3}')
    a(f'v_lshrrev_b32 v{T1}, 1, v{T1}')
    a(f'v_xor_b32 v{T1}, v{T1}, v{T3}')
    a(f'v_lshl_add_u32 v{T2}, v{T1}, 4, v{T2}')
    a(f's_add_u32 s{S_T0}, s{S_T0}, 24576')
    a(f'v_add_u32 v{vV}, s{S_T0}, v{T2}')
    for t in range(1,8): a(f'v_xor_b32 v{vV+t}, {32*t}, v{vV}')
    a('s_waitcnt lgkmcnt(4)')
    for U in range(4):
        a(f'v_mfma_f32_16x16x32_bf16 v[{S}:{S+3}], v[{KF+U*4}:{KF+U*4+3}], v[{QF+4*U}:{QF+4*U+3}], '+('0' if U==0 else f'v[{S}:{S+3}]'))
    for U in range(4): a(f'ds_read_b128 v[{KF+(8+U)*4}:{KF+(8+U)*4+3}], v{vK+U} offset:8192')
    a('s_waitcnt lgkmcnt(4)')
    for U in range(4):
        a(f'v_mfma_f32_16x16x32_bf16 v[{S+4}:{S+7}], v[{KF+(4+U)*4}:{KF+(4+U)*4+3}], v[{QF+4*U}:{QF+4*U+3}], '+('0' if U==0 else f'v[{S+4}:{S+7}]'))
    a('s_waitcnt lgkmcnt(0)')
    for U in range(4):
        a(f'v_mfma_f32_16x16x32_bf16 v[{S+8}:{S+11}], v[{KF+(8+U)*4}:{KF+(8+U)*4+3}], v[{QF+4*U}:{QF+4*U+3}], '+('0' if U==0 else f'v[{S+8}:{S+11}]'))
    def vreads(ts):
        for t in ts:
            a(f'ds_read_b64_tr_b16 v[{VF32+4*t}:{VF32+4*t+1}], v{vV+t}')
            a(f'ds_read_b64_tr_b16 v[{VF32+4*t+2}:{VF32+4*t+3}], v{vV+t} offset:4096')
            a(f'ds_read_b64_tr_b16 v[{VF16+2*t}:{VF16+2*t+1}], v{vV+t} offset:8192')
    vreads(range(0,4))
    for p in range(6): a(f'v_cvt_pk_bf16_f32 v{TP+p}, v{S+2*p}, v{S+2*p+1}')
    for p in range(6):
        a(f'v_lshlrev_b32 v{X+2*p}, 16, v{TP+p}')
        a(f'v_and_b32 v{X+2*p+1}, 0xffff0000, v{TP+p}')
    for i in range(12): a(f'v_mul_f32 v{X+i}, {SCALE}, v{X+i}')
    for p in range(6): a(f'v_cvt_pk_bf16_f32 v{TP+p}, v{X+2*p}, v{X+2*p+1}')
    for p in range(6):
        a(f'v_lshlrev_b32 v{X+2*p}, 16, v{TP+p}')
        a(f'v_and_b32 v{X+2*p+1}, 0xffff0000, v{TP+p}')
    a('s_waitcnt lgkmcnt(0)')
    vreads(range(4,8))
    M=62; M2=63
    a(f'v_max3_f32 v{M}, v{X}, v{X+1}, v{X+2}')
    for i in range(3,11,2): a(f'v_max3_f32 v{M}, v{M}, v{X+i}, v{X+i+1}')
    a(f'v_max_f32 v{M}, v{M}, v{X+11}')
    for sw in ('v_permlane32_swap_b32','v_permlane16_swap_b32'):
        a(f'v_mov_b32 v{M2}, v{M}')
        a(f'{sw} v{M}, v{M2}')
        a(f'v_max_f32 v{M}, v{M}, v{M2}')
    a(f'v_mul_f32 v{M}, s{S_L2E}, v{M}')
    for i in range(12): a(f'v_fma_f32 v{X+i}, v{X+i}, s{S_L2E}, -v{M}')
    for i in range(12): a(f'v_exp_f32 v{X+i}, v{X+i}')
    SM=64
    a(f'v_add_f32 v{SM}, v{X}, v{X+1}')
    for i in range(2,12): a(f'v_add_f32 v{SM}, v{SM}, v{X+i}')
    for sw in ('v_permlane32_swap_b32','v_permlane16_swap_b32'):
        a(f'v_mov_b32 v{M2}, v{SM}')
        a(f'{sw} v{SM}, v{M2}')
        a(f'v_add_f32 v{SM}, v{SM}, v{M2}')
    a(f'v_rcp_f32 v{SM}, v{SM}')
    for i in range(12): a(f'v_mul_f32 v{X+i}, v{X+i}, v{SM}')
    for p in range(6): a(f'v_cvt_pk_bf16_f32 v{PP+p}, v{X+2*p}, v{X+2*p+1}')
    a('s_waitcnt lgkmcnt(0)')
    for t in range(8):
        a(f'v_mfma_f32_16x16x32_bf16 v[{OA+4*t}:{OA+4*t+3}], v[{VF32+4*t}:{VF32+4*t+3}], v[{PP}:{PP+3}], 0')
    for t in range(8):
        a(f'v_mfma_f32_16x16x16_bf16 v[{OA+4*t}:{OA+4*t+3}], v[{VF16+2*t}:{VF16+2*t+1}], v[{PP+4}:{PP+5}], v[{OA+4*t}:{OA+4*t+3}]')
    a(f's_lshl_b32 s{S_T0}, s{S_BP}, 5')
    a(f's_add_u32 s{S_T0}, s{S_T0}, s{S_HEAD}')
    a(f's_mul_i32 s{S_T0}, s{S_T0}, 24576')
    a(f's_mul_i32 s{S_T1}, s{S_BB}, 6144')
    a(f's_lshl_b32 s{S_T2}, s{S_MT}, 11')
    a(f's_add_u32 s{S_T1}, s{S_T1}, s{S_T2}')
    a(f's_add_u32 s{S_T0}, s{S_T0}, s{S_T1}')
    a(f's_add_u32 s{S_T2}, s{S_T0}, 12288')
    a(f'v_lshlrev_b32 v{vQ}, 4, v0')
    a(f'v_add_u32 v{vK}, s{S_T1}, v{vQ}')
    a(f'v_add_u32 v{vK+1}, {STAGE}, v{vK}')
    for u in range(4):
        for h2 in range(2):
            t=2*u+h2
            a(f'v_cvt_pk_bf16_f32 v{OP+4*u+2*h2}, v{OA+4*t}, v{OA+4*t+1}')
            a(f'v_cvt_pk_bf16_f32 v{OP+4*u+2*h2+1}, v{OA+4*t+2}, v{OA+4*t+3}')
        off=f' offset:{(u&1)*1024}' if u&1 else ''
        a(f'buffer_store_dwordx4 v[{OP+4*u}:{OP+4*u+3}], v{vQ}, s[{R_WS}:{R_WS+3}], s{S_T0 if u<2 else S_T2} offen{off} sc1')
        a(f'ds_write_b128 v{vK+(u>>1)}, v[{OP+4*u}:{OP+4*u+3}]{off}')
    a(f's_lshl_b32 s{S_T0}, s{S_KS}, 3')
    a(f's_add_u32 s{S_T0}, s{S_T0}, s{S_BP}')
    a(f's_lshl_b32 s{S_T0}, s{S_T0}, 9')
    a(f's_lshl_b32 s{S_T1}, s{S_NT}, 6')
    a(f's_add_u32 s{S_T0}, s{S_T0}, s{S_T1}')
    a(f's_lshl_b32 s{S_T1}, s{S_W}, 3')
    a(f's_add_u32 s{S_T0}, s{S_T0}, s{S_T1}')
    a(f's_add_u32 s{S_KVM}, s{S_T0}, {WS_FO}')
    a(f'v_mov_b32 v{T5}, 0')
    stamp(a,5)
    a(f's_cmp_ge_u32 s{S_W}, 4')
    a('s_cbranch_scc1 L_ld45')
    a.c('==== consumer P2')
    a(f's_mul_i32 s{S_T0}, s{S_WM}, 6144')
    a(f'v_lshl_add_u32 v12, v0, 4, s{S_T0}')
    a('v_add_u32 v13, 1024, v12')
    a(f'v_add_u32 v14, {2*STAGE}, v12')
    a(f'v_add_u32 v15, {2*STAGE}, v13')
    baddr_calc(a,True)
    a('s_waitcnt lgkmcnt(0)')
    a('s_barrier')
    stamp(a,6)
    if OPT['stamps']: a('s_waitcnt lgkmcnt(0)')
    def sig():
        a('s_waitcnt vmcnt(0)')
        flag_store(a,S_KVM,T5)
        stamp(a,7)
    consumer_loop(a, prebar={1:sig})
    stamp(a,8)
    a.c('partials')
    a(f's_lshl_b32 s{S_T3}, s{S_NT}, 3')
    a(f's_add_u32 s{S_T3}, s{S_T3}, s{S_BP}')
    a('v_lshlrev_b32 v1, 4, v0')
    for t in range(1,4):
        a(f's_add_u32 s{S_T0}, s{S_KS}, {t}')
        a(f's_and_b32 s{S_T0}, s{S_T0}, 3')
        a(f's_lshl_b32 s{S_T1}, s{S_T3}, 2')
        a(f's_add_u32 s{S_T0}, s{S_T0}, s{S_T1}')
        a(f's_lshl_b32 s{S_T0}, s{S_T0}, 2')
        a(f's_add_u32 s{S_T0}, s{S_T0}, s{S_W}')
        a(f's_mul_i32 s{S_T0}, s{S_T0}, 9216')
        a(f's_add_u32 s{S_T0}, s{S_T0}, {WS_P+(t-1)*3072}')
        for mt in range(3):
            ac=ACC+(t*3+mt)*4
            off=f' offset:{mt*1024}' if mt else ''
            a(f'buffer_store_dwordx4 v[{ac}:{ac+3}], v1, s[{R_WS}:{R_WS+3}], s{S_T0} offen{off} sc1')
    a(f's_lshl_b32 s{S_T0}, s{S_T3}, 7')
    a(f's_lshl_b32 s{S_T1}, s{S_W}, 5')
    a(f's_add_u32 s{S_T0}, s{S_T0}, s{S_T1}')
    a(f's_add_u32 s{S_T2}, s{S_T0}, {WS_FP}')
    a(f's_lshl_b32 s{S_T1}, s{S_KS}, 3')
    a(f's_add_u32 s{S_KVM}, s{S_T2}, s{S_T1}')
    a('v_and_b32 v2, 3, v0')
    a('v_lshlrev_b32 v2, 3, v2')
    a(f's_lshl_b32 s{S_T1}, s{S_T3}, 2')
    a(f's_add_u32 s{S_T1}, s{S_T1}, s{S_KS}')
    a(f's_lshl_b32 s{S_T1}, s{S_T1}, 2')
    a(f's_add_u32 s{S_T1}, s{S_T1}, s{S_W}')
    a(f's_mul_i32 s{S_T1}, s{S_T1}, 9216')
    a(f's_add_u32 s{S_AO}, s{S_T1}, {WS_P}')
    a(f's_mul_i32 s{S_T0}, s{S_BP}, 96')
    a(f's_mul_i32 s{S_T1}, s{S_WM}, 48')
    a(f's_add_u32 s{S_T0}, s{S_T0}, s{S_T1}')
    a(f's_lshl_b32 s{S_T0}, s{S_T0}, 11')
    a(f's_lshl_b32 s{S_T1}, s{S_NT}, 8')
    a(f's_add_u32 s{S_T0}, s{S_T0}, s{S_T1}')
    a(f's_lshl_b32 s{S_T1}, s{S_WN}, 7')
    a(f's_add_u32 s{S_T0}, s{S_T0}, s{S_T1}')
    a(f's_lshl_b32 s{S_T1}, s{S_KS}, 5')
    a(f's_add_u32 s{S_BO}, s{S_T0}, s{S_T1}')
    a(f'v_lshlrev_b32 v3, 11, v{V_M}')
    a(f'v_lshl_add_u32 v3, v{V_G}, 3, v3')
    a('s_waitcnt vmcnt(0)')
    flag_store(a,S_KVM,T5)
    stamp(a,9)
    poll(a,'p',2,S_T2,4)
    stamp(a,10)
    R=80
    for t in range(3):
        a(f's_add_u32 s{S_T0}, s{S_AO}, {t*3072}')
        for mt in range(3):
            r=R+(t*3+mt)*4
            off=f' offset:{mt*1024}' if mt else ''
            a(f'buffer_load_dwordx4 v[{r}:{r+3}], v1, s[{R_WS}:{R_WS+3}], s{S_T0} offen{off} sc1')
    for mt in range(3):
        ac=ACC+mt*4
        if mt==0: a('s_waitcnt vmcnt(0)')
        for e in range(4):
            a(f'v_add_f32 v{ac+e}, v{ac+e}, v{R+(0*3+mt)*4+e}')
            a(f'v_add_f32 v{ac+e}, v{ac+e}, v{R+(1*3+mt)*4+e}')
            a(f'v_add_f32 v{ac+e}, v{ac+e}, v{R+(2*3+mt)*4+e}')
        a(f'v_cvt_pk_bf16_f32 v{ac}, v{ac}, v{ac+1}')
        a(f'v_cvt_pk_bf16_f32 v{ac+1}, v{ac+2}, v{ac+3}')
        a(f'buffer_store_dwordx2 v[{ac}:{ac+1}], v3, s[{R_OUT}:{R_OUT+3}], s{S_BO} offen')
        if mt<2: a(f's_add_u32 s{S_BO}, s{S_BO}, {16*2048}')
    if OPT['stamps']==3:
        a('s_waitcnt vmcnt(0)')
        stamp(a,11)
        a('s_waitcnt lgkmcnt(0)')
        a(f's_xor_b32 s{S_T0}, s2, {OPT["dbgwg"]}')
        a(f's_or_b32 s{S_T0}, s{S_T0}, s{S_W}')
        a(f's_cmp_eq_u32 s{S_T0}, 0')
        a('s_cbranch_scc0 L_end')
        a('v_mov_b32 v2, 0')
        for j in range(NST):
            a(f's_sub_u32 s{S_T0}, s{S_ST+2*j}, s{S_N}')
            a(f'v_mov_b32 v4, s{S_T0}')
            a(f'buffer_store_dword v4, v2, s[{R_DBG}:{R_DBG+3}], 0 offen offset:{8+4*j}')
            a('s_nop 1')
    elif OPT['stamps']:
        a('s_waitcnt vmcnt(0)')
        stamp(a,11)
        a(f's_cmp_eq_u32 s{S_W}, 0')
        a('s_cbranch_scc0 L_end')
        stamp_flush(a,'c',0)
    a('s_endpgm')
    a.label('L_ld45')
    a('s_waitcnt vmcnt(0) lgkmcnt(0)')
    flag_store(a,S_KVM,T5)
    a('s_branch L_ldbx')
    a.label('L_pref')
    a(f's_lshl_b32 s{S_T0}, s{S_NT}, 7')
    a(f's_mul_i32 s{S_T1}, s{S_BP}, 96')
    a(f's_add_u32 s{S_T0}, s{S_T0}, s{S_T1}')
    a(f's_sub_u32 s{S_T1}, s{S_W}, 6')
    a(f's_mul_i32 s{S_T1}, s{S_T1}, 48')
    a(f's_add_u32 s{S_T0}, s{S_T0}, s{S_T1}')
    a(f's_add_u32 s{S_T0}, s{S_T0}, 256')
    a(f'v_lshlrev_b32 v{T0}, 11, v{V_G}')
    a(f'v_lshl_add_u32 v{T0}, v{V_M}, 4, v{T0}')
    for k in range(12):
        a(f's_and_b32 s{S_T1}, s{S_T0}, 1023')
        a(f's_lshl_b32 s{S_T1}, s{S_T1}, 11')
        a(f'buffer_load_dwordx4 v[{V_JUNK}:{V_JUNK+3}], v{T0}, s[{R_WO}:{R_WO+3}], s{S_T1} offen')
        if k<11: a(f's_add_u32 s{S_T0}, s{S_T0}, 4')
    a('s_waitcnt vmcnt(12)')
    a.label('L_ldbx')
    a.c('==== loader P2')
    vm=VM(a)
    a(f's_sub_u32 s{S_LI}, s{S_W}, 4')
    a(f'v_lshlrev_b32 v1, 4, v0')
    a(f's_mul_i32 s{S_T0}, s{S_LI}, 3072')
    a(f'v_add_u32 v1, s{S_T0}, v1')
    a(f's_lshl_b32 s{S_T0}, s{S_BP}, 5')
    a(f's_lshl_b32 s{S_T1}, s{S_KS}, 3')
    a(f's_add_u32 s{S_T0}, s{S_T0}, s{S_T1}')
    a(f's_mul_i32 s{S_T3}, s{S_T0}, 24576')
    a(f'v_lshrrev_b32 v2, 3, v0')
    a(f'v_and_b32 v3, 7, v0')
    a(f'v_min_u32 v3, 5, v3')
    a(f'v_lshlrev_b32 v3, 3, v3')
    a(f'v_lshl_add_u32 v2, v2, 6, v3')
    a(f's_lshl_b32 s{S_T0}, s{S_KS}, 3')
    a(f's_add_u32 s{S_T0}, s{S_T0}, s{S_BP}')
    a(f's_lshl_b32 s{S_T0}, s{S_T0}, 9')
    a(f's_add_u32 s{S_KVM}, s{S_T0}, {WS_FO}')
    fstamp(a,'preBX')
    a('s_barrier')
    stamp(a,6)
    fstamp(a,'BX')
    a('s_barrier')
    fstamp(a,'2B0')
    poll(a,'o',2,S_KVM,12)
    stamp(a,7)
    fstamp(a,'poll')
    def offs(st):
        a(f's_lshl_b32 s{S_T0}, s{S_NT}, 1')
        a(f's_add_u32 s{S_T0}, s{S_T0}, {st}')
        a(f's_and_b32 s{S_T0}, s{S_T0}, 15')
        a(f's_lshl_b32 s{S_BO}, s{S_T0}, 17')
        a(f's_mul_i32 s{S_AO}, s{S_T0}, 12288')
        a(f's_add_u32 s{S_AO}, s{S_AO}, s{S_T3}')
    VA2=[1,1,1]
    offs(2); issueA(R_WS,VA2,2,2,' sc1')
    offs(3); issueA(R_WS,VA2,3,3,' sc1')
    offs(4); issueA(R_WS,VA2,4,4,' sc1'); issueB(R_WO,V_B2,4,4)
    for st in range(1,16):
        if st<15: vm.wait(st+1)
        fstamp(a,f'2w{st+1}')
        a('s_barrier')
        fstamp(a,f'2B{st}')
        if st==1: stamp(a,8)
        if st+4<16:
            offs(st+4); issueA(R_WS,VA2,st+4,st+4,' sc1'); issueB(R_WO,V_B2,st+4,st+4)
    fstamp_flush(a)
    if OPT['stamps'] in (1,2):
        stamp(a,9)
        a(f's_cmp_eq_u32 s{S_W}, 4')
        a('s_cbranch_scc0 L_end')
        stamp_flush(a,'l',1)
    a.label('L_end')
    a('s_endpgm')
    return a

def kd(name, vg):
    return f""".p2align 6
.amdhsa_kernel {name}
  .amdhsa_next_free_vgpr {vg}
  .amdhsa_next_free_sgpr 100
  .amdhsa_accum_offset {vg}
  .amdhsa_group_segment_fixed_size 0
  .amdhsa_kernarg_size 64
  .amdhsa_user_sgpr_count 2
  .amdhsa_user_sgpr_kernarg_segment_ptr 1
  .amdhsa_system_sgpr_workgroup_id_x 1
.end_amdhsa_kernel
"""

def build():
    ref=open('cdna_kernels/'+NAME+'.s.ref').read().split('\n')
    hdr=[l for l in ref if l.startswith(';') and '@launch' not in l and 'Override' not in l and 'grid=ceil' not in l]
    out='\n'.join(hdr[:9])+'\n'
    out+='; @launch grid=(256,1,1) block=(512,1,1) lds=163840\n'
    out+='.amdgcn_target "amdgcn-amd-amdhsa--gfx950"\n.text\n'
    out+=build_kernel().text()
    out+='.section .rodata,"a"\n'
    out+=kd(K,256)
    return out

if __name__=='__main__':
    dst='cdna_kernels/'+NAME+'.s'
    for x in sys.argv[1:]:
        if '=' in x:
            k,v=x.split('='); OPT[k]=int(v)
        else: dst=x
    open(dst,'w').write(build())
    if '_names' in OPT: open(dst+'.names','w').write('\n'.join(OPT['_names'])+'\n')
    print('wrote',dst)
```

```python
import sys
from asmlib import Asm

NAME='standalone__mha_block_cached__near_ridge'
K=NAME+'_kernel'
STAGE=28672
KVBASE=4*STAGE
WS_O=0
WS_P=8<<20
WS_FO=20<<20
WS_FP=(20<<20)+65536
SZ_WS=21<<20
SZ_X=768*2048; SZ_W=1024*8192; SZ_KV=16*32*12288; SZ_OUT=768*2048
SCALE='0x3db504f3'; LOG2E='0x3fb8aa3b'
SPIN=1<<15

OPT=dict(stamps=0, kvnt=1, rot=1, kvst=0, prio=0, npro=3, dbgwg=0, aslist=0)

V_A=[1,2,3]; V_B=[4,5,6,7]; V_B2=[8,9,10,11]
V_KV=[8,9,10,11]
V_AADDR=[[12,13],[14,15]]; V_BADDR=[[16,17,18,19],[20,21,22,23]]
V_G=24; V_M=25
T0=26; T1=27; T2=28; T3=29; T4=30; T5=31
ACC=32; FA=80; FB=104
V_N=140
V_JUNK=252
S_XP=4; S_KP=6; S_VP=8; S_WQP=10; S_WOP=12; S_OUTP=14; S_DBGP=16; S_WSP=18
R_X=20; R_WQ=24; R_KV=28; R_WS=32; R_WO=84; R_OUT=88; R_DBG=92
S_W=36; S_HEAD=37; S_BP=38; S_KS=39; S_NT=40
S_AO=41; S_BO=42; S_M0A=43; S_M0B=44
S_T0=45; S_T1=46; S_T2=47; S_KVM=48; S_T3=49; S_WM=50; S_WN=51
S_BB=52; S_MT=53; S_CUR=54; S_CNT=55; S_L2E=56; S_LI=57
S_N=58
S_ST=60
NST=12

def srd(a, d, base, size, add=None):
    if add is None:
        a(f's_mov_b32 s{d}, s{base}')
        a(f's_mov_b32 s{d+1}, s{base+1}')
        a(f's_mov_b32 s{d+2}, {size}')
    else:
        a(f's_add_u32 s{d}, s{base}, s{add}')
        a(f's_addc_u32 s{d+1}, s{base+1}, 0')
        a(f's_sub_u32 s{d+2}, {size}, s{add}')
    a(f's_mov_b32 s{d+3}, 0x20000')

def stamp(a,j):
    if OPT['stamps']: a(f's_memrealtime s[{S_ST+2*j}:{S_ST+2*j+1}]')
def stamp_flush(a,tag,li):
    if not OPT['stamps']: return
    a('s_waitcnt lgkmcnt(0)')
    a(f's_mov_b32 s{S_T0}, {(64<<20)+li*256*NST*8}')
    a(f's_mul_i32 s{S_T1}, s2, {NST*8}')
    a(f's_add_u32 s{S_T0}, s{S_T0}, s{S_T1}')
    srd(a,R_X,S_WSP,256<<20,S_T0)
    a('v_mov_b32 v2, 0')
    for j in range(NST):
        a(f'v_mov_b32 v4, s{S_ST+2*j}')
        a(f'v_mov_b32 v5, s{S_ST+2*j+1}')
        a(f'buffer_store_dwordx2 v[4:5], v2, s[{R_X}:{R_X+3}], 0 offen offset:{8*j}')
        a('s_nop 1')

FINE=[]
V_FS=200
def fstamp(a,name):
    if OPT['stamps']!=2: return
    i=len(FINE)
    if i>0:
        a('s_waitcnt lgkmcnt(0)')
        a(f'v_writelane_b32 v{V_FS+((i-1)>>6)}, s96, {(i-1)&63}')
    a('s_memrealtime s[96:97]')
    FINE.append(name)
def fstamp_flush(a):
    if OPT['stamps']!=2: return
    i=len(FINE)
    a('s_waitcnt lgkmcnt(0)')
    a(f'v_writelane_b32 v{V_FS+((i-1)>>6)}, s96, {(i-1)&63}')
    a(f's_cmp_eq_u32 s{S_W}, 6')
    a('s_cbranch_scc0 L_nofs')
    a(f's_mov_b32 s{S_T0}, {(65<<20)}')
    a(f's_lshl_b32 s{S_T1}, s2, 9')
    a(f's_add_u32 s{S_T0}, s{S_T0}, s{S_T1}')
    srd(a,R_X,S_WSP,256<<20,S_T0)
    a('v_lshlrev_b32 v2, 2, v0')
    a(f'buffer_store_dword v{V_FS}, v2, s[{R_X}:{R_X+3}], 0 offen')
    a(f'buffer_store_dword v{V_FS+1}, v2, s[{R_X}:{R_X+3}], 0 offen offset:256')
    a.label('L_nofs')
    OPT['_names']=list(FINE)

class VM:
    def __init__(s,a): s.a=a; s.q=[]
    def issue(s,text,tag):
        s.a(text); s.q.append(tag)
    def note(s,tag): s.q.append(tag)
    def wait(s,tag):
        idx=max(i for i,t in enumerate(s.q) if t==tag)
        n=len(s.q)-1-idx
        s.a(f's_waitcnt vmcnt({n})')
        del s.q[:idx+1]
    def waitall(s):
        s.a('s_waitcnt vmcnt(0)'); s.q=[]

def frag_reads(st,ks):
    slot=st%4; se=slot>>1; so=(slot&1)*STAGE
    L=[]
    for mt in range(3):
        r=FA+(ks*3+mt)*4
        L.append(f'ds_read_b128 v[{r}:{r+3}], v{V_AADDR[se][ks]} offset:{so+mt*2048}')
    for t in range(4):
        r=FB+(ks*4+t)*4
        for hh in range(2):
            L.append(f'ds_read_b64_tr_b16 v[{r+2*hh}:{r+2*hh+1}], v{V_BADDR[se][t]} offset:{so+12288+ks*8192+hh*1024}')
    return L
def mfmas(ks, first):
    L=[]
    for t in range(4):
        for mt in range(3):
            ac=ACC+(t*3+mt)*4
            fa=FA+(ks*3+mt)*4; fb=FB+(ks*4+t)*4
            c='0' if first else f'v[{ac}:{ac+3}]'
            L.append(f'v_mfma_f32_16x16x32_bf16 v[{ac}:{ac+3}], v[{fb}:{fb+3}], v[{fa}:{fa+3}], {c}')
    return L
def interleave(a, M, others):
    n=len(M); k=len(others); j=0
    for i,m in enumerate(M):
        a(m)
        tgt=min(k,((i+1)*k+n-1)//n) if i<n-1 else k
        while j<tgt:
            a(others[j]); j+=1

def consumer_loop(a, extra2=None, prebar=None, lastreads=False):
    for x in frag_reads(0,0): a(x)
    for st in range(16):
        a.c(f'---- stage {st}')
        a('s_waitcnt lgkmcnt(0)')
        interleave(a, mfmas(0, st==0), frag_reads(st,1))
        if prebar and st in prebar: prebar[st]()
        a('s_waitcnt lgkmcnt(0)')
        a('s_barrier')
        oth=frag_reads(st+1,0) if st<15 else []
        if extra2 and st in extra2:
            ex=extra2[st]
            oth=oth+ex
        interleave(a, mfmas(1,False), oth)

def baddr_calc(a, rot):
    a(f'v_lshrrev_b32 v{T0}, 2, v{V_M}')
    a(f'v_and_b32 v{T1}, 3, v0')
    a(f'v_lshl_add_u32 v{T2}, v{V_G}, 3, v{T0}')
    a(f'v_lshlrev_b32 v{T2}, 8, v{T2}')
    a(f'v_and_b32 v{T3}, 1, v{T1}')
    a(f'v_lshl_add_u32 v{T2}, v{T3}, 3, v{T2}')
    a(f'v_and_b32 v{T3}, 1, v{V_G}')
    a(f'v_lshlrev_b32 v{T3}, 3, v{T3}')
    a(f'v_lshl_add_u32 v{T3}, v{T0}, 1, v{T3}')
    a(f'v_lshrrev_b32 v{T1}, 1, v{T1}')
    a(f's_lshl_b32 s{S_T0}, s{S_WN}, 3')
    a(f'v_or_b32 v{T1}, s{S_T0}, v{T1}')
    for t in range(4):
        if rot:
            a(f's_add_u32 s{S_T0}, s{S_KS}, {t}')
            a(f's_and_b32 s{S_T0}, s{S_T0}, 3')
            a(f's_lshl_b32 s{S_T0}, s{S_T0}, 1')
            a(f'v_or_b32 v{T0}, s{S_T0}, v{T1}')
        else:
            a(f'v_or_b32 v{T0}, {2*t}, v{T1}')
        a(f'v_xor_b32 v{T0}, v{T0}, v{T3}')
        a(f'v_lshl_add_u32 v{V_BADDR[0][t]}, v{T0}, 4, v{T2}')
        a(f'v_add_u32 v{V_BADDR[1][t]}, {2*STAGE}, v{V_BADDR[0][t]}')

def late_srds(a):
    srd(a,R_WS,S_WSP,SZ_WS,None)
    srd(a,R_DBG,S_DBGP,256,None)
    srd(a,R_OUT,S_OUTP,SZ_OUT,None)
    a(f's_lshl_b32 s{S_T0}, s{S_KS}, 21')
    a(f's_lshl_b32 s{S_T1}, s{S_NT}, 8')
    a(f's_add_u32 s{S_T0}, s{S_T0}, s{S_T1}')
    srd(a,R_WO,S_WOP,SZ_W,S_T0)

def nonce_get(a, tag, vm_wait):
    vm_wait()
    a(f's_mov_b32 s{S_CNT}, {SPIN}')
    a.label(f'Ln_{tag}')
    a(f'v_readfirstlane_b32 s{S_N}, v{V_N}')
    a(f'v_readfirstlane_b32 s{S_N+1}, v{V_N+1}')
    a(f's_cmp_lg_u32 s{S_N+1}, 0')
    a(f's_cbranch_scc1 Lnd_{tag}')
    a(f's_sub_u32 s{S_CNT}, s{S_CNT}, 1')
    a(f's_cmp_eq_u32 s{S_CNT}, 0')
    a(f's_cbranch_scc1 Lnd_{tag}')
    a('s_sleep 2')
    a(f'v_mov_b32 v{T0}, 0')
    a(f'buffer_load_dwordx2 v[{V_N}:{V_N+1}], v{T0}, s[{R_DBG}:{R_DBG+3}], 0 offen sc1')
    a('s_waitcnt vmcnt(0)')
    a(f's_branch Ln_{tag}')
    a.label(f'Lnd_{tag}')

def poll(a, tag, voff, soff, vd):
    a(f's_mov_b32 s{S_CNT}, {SPIN}')
    a.label(f'Lp_{tag}')
    a(f'buffer_load_dwordx2 v[{vd}:{vd+1}], v{voff}, s[{R_WS}:{R_WS+3}], s{soff} offen sc1')
    a('s_waitcnt vmcnt(0)')
    a(f'v_cmp_ne_u64 vcc, s[{S_N}:{S_N+1}], v[{vd}:{vd+1}]')
    a(f's_cbranch_vccz Lpd_{tag}')
    a(f's_sub_u32 s{S_CNT}, s{S_CNT}, 1')
    a(f's_cmp_eq_u32 s{S_CNT}, 0')
    a(f's_cbranch_scc0 Lp_{tag}')
    a.label(f'Lpd_{tag}')

def flag_store(a, soff_reg, voff):
    a(f'v_mov_b32 v{V_N}, s{S_N}')
    a(f'v_mov_b32 v{V_N+1}, s{S_N+1}')
    a(f'buffer_store_dwordx2 v[{V_N}:{V_N+1}], v{voff}, s[{R_WS}:{R_WS+3}], s{soff_reg} offen sc1')

def build_kernel():
    a=Asm()
    a.raw(f'.globl {K}\n.p2align 8\n.type {K},@function\n{K}:')
    a('s_cmp_ge_u32 s2, 256')
    a('s_cbranch_scc1 L_end')
    a('s_load_dwordx16 s[4:19], s[0:1], 0')
    for j in range(NST): stamp(a,j)
    a('v_lshrrev_b32 v1, 6, v0')
    a('v_and_b32 v0, 63, v0')
    a(f'v_readfirstlane_b32 s{S_W}, v1')
    a(f'v_lshrrev_b32 v{V_G}, 4, v0')
    a(f'v_and_b32 v{V_M}, 15, v0')
    a(f's_and_b32 s{S_T0}, s2, 7')
    a(f's_lshr_b32 s{S_BP}, s2, 3')
    a(f's_and_b32 s{S_T1}, s{S_BP}, 3')
    a(f's_lshl_b32 s{S_HEAD}, s{S_T0}, 2')
    a(f's_add_u32 s{S_HEAD}, s{S_HEAD}, s{S_T1}')
    a(f's_lshr_b32 s{S_BP}, s{S_BP}, 2')
    a(f's_lshr_b32 s{S_KS}, s{S_HEAD}, 3')
    a(f's_and_b32 s{S_NT}, s{S_HEAD}, 7')
    a(f's_cmp_ge_u32 s{S_W}, 4')
    a('s_cbranch_scc0 L_cons1')
    a.c('==== loader P1')
    vm=VM(a)
    a(f's_sub_u32 s{S_LI}, s{S_W}, 4')
    if OPT['rot']:
        a(f's_lshl_b32 s{S_CUR}, s{S_T1}, 1')
        a(f's_add_u32 s{S_CUR}, s{S_CUR}, s{S_BP}')
        a(f's_lshl_b32 s{S_CUR}, s{S_CUR}, 1')
        a(f's_and_b32 s{S_CUR}, s{S_CUR}, 15')
    else:
        a(f's_mov_b32 s{S_CUR}, 0')
    a(f'v_lshrrev_b32 v{T4}, 3, v0')
    a(f'v_and_b32 v{T5}, 7, v0')
    a(f's_mul_i32 s{S_T3}, s{S_LI}, 3')
    for ii in range(3):
        a(f's_add_u32 s{S_T0}, s{S_T3}, {ii}')
        a(f's_and_b32 s{S_T1}, s{S_T0}, 1')
        a(f's_lshl_b32 s{S_T1}, s{S_T1}, 2')
        a(f'v_or_b32 v{T0}, s{S_T1}, v{V_G}')
        a(f'v_xor_b32 v{T0}, v{T0}, v{T5}')
        a(f'v_lshlrev_b32 v{T0}, 4, v{T0}')
        a(f's_lshl_b32 s{S_T0}, s{S_T0}, 14')
        if ii: a(f's_sub_u32 s{S_T0}, s{S_T0}, {ii*1024}')
        a(f'v_lshlrev_b32 v{T1}, 11, v{T4}')
        a(f'v_add3_u32 v{V_A[ii]}, v{T0}, v{T1}, s{S_T0}')
    for hh in range(2):
        a(f'v_or_b32 v{T2+hh}, {hh<<2}, v{V_G}')
        a(f'v_lshlrev_b32 v{T2+hh}, 1, v{T2+hh}')
        a(f'v_xor_b32 v{T2+hh}, v{T2+hh}, v{V_M}')
        a(f'v_lshlrev_b32 v{T2+hh}, 4, v{T2+hh}')
    a(f'v_lshlrev_b32 v{T1}, 13, v{V_G}')
    for ii in range(4):
        a(f's_lshl_b32 s{S_T0}, s{S_LI}, 17')
        if ii: a(f's_add_u32 s{S_T0}, s{S_T0}, {ii*4*8192-ii*1024}')
        a(f'v_add3_u32 v{V_B[ii]}, v{T2+(ii>>1)}, v{T1}, s{S_T0}')
    a(f's_mul_i32 s{S_M0A}, s{S_LI}, 3072')
    a(f's_lshl_b32 s{S_M0B}, s{S_LI}, 12')
    a(f's_add_u32 s{S_M0B}, s{S_M0B}, 12288')
    a(f's_lshl_b32 s{S_AO}, s{S_CUR}, 7')
    a(f's_lshl_b32 s{S_BO}, s{S_CUR}, 19')
    a('s_waitcnt lgkmcnt(0)')
    a(f's_mul_i32 s{S_T0}, s{S_BP}, 196608')
    srd(a,R_X,S_XP,SZ_X,S_T0)
    a(f's_lshl_b32 s{S_T0}, s{S_HEAD}, 8')
    srd(a,R_WQ,S_WQP,SZ_W,S_T0)
    def issueA(rs,va,st,tag,aux=''):
        slot=st%4
        a(f's_add_u32 m0, s{S_M0A}, {slot*STAGE}')
        for ii in range(3):
            off=f' offset:{ii*1024}' if ii else ''
            vm.issue(f'buffer_load_dwordx4 v{va[ii]}, s[{rs}:{rs+3}], s{S_AO} offen{off}{aux} lds',tag)
    def issueB(rs,vb,st,tag,aux=''):
        slot=st%4
        a(f's_add_u32 m0, s{S_M0B}, {slot*STAGE}')
        for ii in range(4):
            off=f' offset:{ii*1024}' if ii else ''
            vm.issue(f'buffer_load_dwordx4 v{vb[ii]}, s[{rs}:{rs+3}], s{S_BO} offen{off}{aux} lds',tag)
    def adv1():
        a(f's_add_u32 s{S_AO}, s{S_AO}, 128')
        a(f's_and_b32 s{S_AO}, s{S_AO}, 2047')
        a(f's_lshl_b32 s{S_BO}, s{S_AO}, 12')
    fstamp(a,'start')
    NPRO=OPT['npro']
    for st in range(NPRO):
        issueA(R_X,V_A,st,st); issueB(R_WQ,V_B,st,st); adv1()
        fstamp(a,f'pro{st}')
    stamp(a,1)
    late_srds(a)
    a(f'v_lshlrev_b32 v{T1}, 11, v{V_G}')
    a(f's_lshr_b32 s{S_T1}, s{S_LI}, 1')
    a(f's_lshl_b32 s{S_T1}, s{S_T1}, 5')
    a(f's_and_b32 s{S_T2}, s{S_LI}, 1')
    a(f's_lshl_b32 s{S_T2}, s{S_T2}, 3')
    a(f's_add_u32 s{S_T1}, s{S_T1}, s{S_T2}')
    a(f's_lshl_b32 s{S_T1}, s{S_T1}, 11')
    for ii in range(4):
        c=(16*(ii&1)+4*(ii>>1))*2048-ii*1024
        a(f's_add_u32 s{S_T0}, s{S_T1}, {c}' if c>=0 else f's_sub_u32 s{S_T0}, s{S_T1}, {-c}')
        a(f'v_add3_u32 v{V_B2[ii]}, v{T2+(ii>>1)}, v{T1}, s{S_T0}')
    vm.wait(0)
    fstamp(a,'w0')
    a('s_barrier')
    stamp(a,2)
    fstamp(a,'B-1')
    for st in range(NPRO,4):
        issueA(R_X,V_A,st,st); issueB(R_WQ,V_B,st,st); adv1()
    def wo_off(st):
        a(f's_lshl_b32 s{S_T0}, s{S_NT}, 1')
        a(f's_add_u32 s{S_T0}, s{S_T0}, {st}')
        a(f's_and_b32 s{S_T0}, s{S_T0}, 15')
        a(f's_lshl_b32 s{S_BO}, s{S_T0}, 17')
        return S_T0
    for st in range(16):
        if st<15: vm.wait(st+1)
        fstamp(a,f'w{st+1}')
        a('s_barrier')
        fstamp(a,f'B{st}')
        if st<12:
            issueA(R_X,V_A,st+4,st+4); issueB(R_WQ,V_B,st+4,st+4); adv1()
        else:
            if st==12:
                a(f'v_mov_b32 v{T0}, 0')
                vm.issue(f'buffer_load_dwordx2 v[{V_N}:{V_N+1}], v{T0}, s[{R_DBG}:{R_DBG+3}], 0 offen sc1','n')
            wo_off(st-12)
            issueB(R_WO,V_B2,st-12,('p',st-12))
    stamp(a,3)
    nonce_get(a,'l',lambda: vm.wait('n'))
    a('s_branch L_bq')
    ldq=list(vm.q)
    a.label('L_cons1')
    a.c('==== consumer P1')
    if OPT['prio']: a(f's_setprio {OPT["prio"]}')
    a(f's_and_b32 s{S_WM}, s{S_W}, 1')
    a(f's_lshr_b32 s{S_WN}, s{S_W}, 1')
    a(f'v_lshrrev_b32 v{T0}, 1, v{V_M}')
    a(f'v_xor_b32 v{T0}, v{T0}, v{V_G}')
    a(f'v_lshlrev_b32 v{T0}, 4, v{T0}')
    a(f's_mul_i32 s{S_T0}, s{S_WM}, 6144')
    a(f'v_lshl_add_u32 v{T1}, v{V_M}, 7, s{S_T0}')
    a(f'v_add_u32 v12, v{T0}, v{T1}')
    a('v_xor_b32 v13, 64, v12')
    a(f'v_add_u32 v14, {2*STAGE}, v12')
    a(f'v_add_u32 v15, {2*STAGE}, v13')
    baddr_calc(a,False)
    a(f's_cmp_ge_u32 s{S_W}, 2')
    a('s_cbranch_scc1 L_kvV')
    for i in range(4):
        a(f'v_or_b32 v{T0}, {i<<2}, v{V_G}')
        a(f'v_xor_b32 v{T0}, v{T0}, v{V_M}')
        a(f'v_lshlrev_b32 v{T0}, 4, v{T0}')
        a(f'v_lshl_add_u32 v{V_KV[i]}, v{V_G}, 8, v{T0}')
    a('s_branch L_kvdone')
    a.label('L_kvV')
    for i in range(4):
        a(f'v_or_b32 v{T0}, {(i&1)<<2}, v{V_G}')
        a(f'v_lshlrev_b32 v{T0}, 1, v{T0}')
        a(f'v_xor_b32 v{T0}, v{T0}, v{V_M}')
        a(f'v_lshlrev_b32 v{T0}, 4, v{T0}')
        a(f'v_lshl_add_u32 v{V_KV[i]}, v{V_G}, 8, v{T0}')
    a.label('L_kvdone')
    a(f's_mul_i32 s{S_KVM}, s{S_W}, 12288')
    a(f's_add_u32 s{S_KVM}, s{S_KVM}, {KVBASE}')
    a('s_waitcnt lgkmcnt(0)')
    a(f's_lshl_b32 s{S_T0}, s{S_BP}, 1')
    a(f's_add_u32 s{S_T0}, s{S_T0}, s{S_WM}')
    a(f's_lshl_b32 s{S_T0}, s{S_T0}, 5')
    a(f's_add_u32 s{S_T0}, s{S_T0}, s{S_HEAD}')
    a(f's_mul_i32 s{S_T0}, s{S_T0}, 12288')
    a(f's_cmp_ge_u32 s{S_W}, 2')
    a(f's_cselect_b32 s{S_T1}, s{S_VP}, s{S_KP}')
    a(f's_cselect_b32 s{S_T2}, s{S_VP+1}, s{S_KP+1}')
    srd(a,R_KV,S_T1,SZ_KV,S_T0)
    late_srds(a)
    a(f's_or_b32 s{S_T0}, s2, s{S_W}')
    a(f's_cmp_lg_u32 s{S_T0}, 0')
    a('s_cbranch_scc1 L_nonon')
    a(f's_memrealtime s[{S_N}:{S_N+1}]')
    a('s_waitcnt lgkmcnt(0)')
    a(f's_or_b32 s{S_N+1}, s{S_N+1}, 0x80000000')
    a(f'v_mov_b32 v{V_N}, s{S_N}')
    a(f'v_mov_b32 v{V_N+1}, s{S_N+1}')
    a(f'v_mov_b32 v{T0}, 0')
    a(f'buffer_store_dwordx2 v[{V_N}:{V_N+1}], v{T0}, s[{R_DBG}:{R_DBG+3}], 0 offen sc1')
    a.label('L_nonon')
    stamp(a,1)
    a('s_barrier')
    stamp(a,2)
    if OPT['stamps']: a('s_waitcnt lgkmcnt(0)')
    kvnt=' nt' if OPT['kvnt'] else ''
    ex={}
    k0=OPT['kvst']
    for p in range(6):
        grp=p>>1; L=[]
        L.append(f's_add_u32 m0, s{S_KVM}, {grp*4096}')
        L.append(f's_mov_b32 s{S_T3}, {grp*4096}')
        for i in (2*(p&1),2*(p&1)+1):
            off=f' offset:{i*1024}' if i else ''
            L.append(f'buffer_load_dwordx4 v{V_KV[i]}, s[{R_KV}:{R_KV+3}], s{S_T3} offen{off}{kvnt} lds')
        ex[k0+p]=L
    ex.setdefault(k0+6,[])
    ex[k0+6]+= [f'v_mov_b32 v{T0}, 0', f'buffer_load_dwordx2 v[{V_N}:{V_N+1}], v{T0}, s[{R_DBG}:{R_DBG+3}], 0 offen sc1']
    consumer_loop(a, extra2=ex)
    stamp(a,3)
    a.c('Q to LDS')
    a(f's_mul_i32 s{S_T0}, s{S_WM}, {STAGE}')
    a(f's_lshl_b32 s{S_T1}, s{S_WN}, 11')
    a(f's_add_u32 s{S_T0}, s{S_T0}, s{S_T1}')
    a(f's_add_u32 s{S_T0}, s{S_T0}, {2*STAGE}')
    a(f'v_lshrrev_b32 v1, 1, v{V_G}')
    a('v_lshlrev_b32 v1, 8, v1')
    a(f'v_and_b32 v2, 1, v{V_G}')
    a('v_lshl_add_u32 v1, v2, 3, v1')
    a(f'v_lshl_add_u32 v1, v{V_M}, 4, v1')
    a(f'v_add_u32 v1, s{S_T0}, v1')
    for t in range(4):
        for mt in range(3):
            ac=ACC+(t*3+mt)*4
            r=FA+((t*3+mt)%6)*2
            a(f'v_cvt_pk_bf16_f32 v{r}, v{ac}, v{ac+1}')
            a(f'v_cvt_pk_bf16_f32 v{r+1}, v{ac+2}, v{ac+3}')
            a(f'ds_write_b64 v1, v[{r}:{r+1}] offset:{mt*4096+(t>>1)*1024+(t&1)*512}')
    nonce_get(a,'c',lambda: a('s_waitcnt vmcnt(0)'))
    a('s_waitcnt lgkmcnt(0)')
    a.label('L_bq')
    a('s_barrier')
    stamp(a,4)
    a('s_waitcnt lgkmcnt(0)')
    a(f's_cmp_ge_u32 s{S_W}, 6')
    a('s_cbranch_scc1 L_pref')
    AV=240
    a(f's_mov_b32 s{S_L2E}, {LOG2E}')
    a(f's_cmp_ge_u32 s{S_W}, 3')
    a(f's_cselect_b32 s{S_BB}, 1, 0')
    a(f's_mul_i32 s{S_MT}, s{S_BB}, 3')
    a(f's_sub_u32 s{S_MT}, s{S_W}, s{S_MT}')
    a(f's_mul_i32 s{S_T0}, s{S_BB}, {STAGE}')
    a(f's_lshl_b32 s{S_T1}, s{S_MT}, 12')
    a(f's_add_u32 s{S_T0}, s{S_T0}, s{S_T1}')
    a(f's_add_u32 s{S_T0}, s{S_T0}, {2*STAGE}')
    vQ=AV; vK=AV+1; vV=AV+5
    a(f'v_lshl_add_u32 v{vQ}, v0, 4, s{S_T0}')
    a(f's_mul_i32 s{S_T0}, s{S_BB}, 12288')
    a(f's_add_u32 s{S_T0}, s{S_T0}, {KVBASE}')
    a(f'v_xor_b32 v{vK}, v{V_G}, v{V_M}')
    a(f'v_lshlrev_b32 v{vK}, 4, v{vK}')
    a(f'v_lshl_add_u32 v{vK}, v{V_M}, 8, v{vK}')
    a(f'v_add_u32 v{vK}, s{S_T0}, v{vK}')
    a(f'v_xor_b32 v{vK+1}, 64, v{vK}')
    a(f'v_xor_b32 v{vK+2}, 0x80, v{vK}')
    a(f'v_xor_b32 v{vK+3}, 0xc0, v{vK}')
    QF=80; KF=96; S=32; X=44; TP=56; PP=68; VF32=192; VF16=224; OA=144; OP=176
    for U in range(4): a(f'ds_read_b128 v[{QF+4*U}:{QF+4*U+3}], v{vQ} offset:{U*1024}')
    for t in range(2):
        for U in range(4): a(f'ds_read_b128 v[{KF+(t*4+U)*4}:{KF+(t*4+U)*4+3}], v{vK+U} offset:{t*4096}')
    a(f'v_lshrrev_b32 v{T0}, 2, v{V_M}')
    a(f'v_and_b32 v{T1}, 3, v0')
    a(f'v_lshl_add_u32 v{T2}, v{V_G}, 2, v{T0}')
    a(f'v_lshlrev_b32 v{T2}, 8, v{T2}')
    a(f'v_and_b32 v{T3}, 1, v{T1}')
    a(f'v_lshl_add_u32 v{T2}, v{T3}, 3, v{T2}')
    a(f'v_and_b32 v{T3}, 1, v{V_G}')
    a(f'v_lshlrev_b32 v{T3}, 3, v{T3}')
    a(f'v_lshl_add_u32 v{T3}, v{T0}, 1, v{T3}')
    a(f'v_lshrrev_b32 v{T1}, 1, v{T1}')
    a(f'v_xor_b32 v{T1}, v{T1}, v{T3}')
    a(f'v_lshl_add_u32 v{T2}, v{T1}, 4, v{T2}')
    a(f's_add_u32 s{S_T0}, s{S_T0}, 24576')
    a(f'v_add_u32 v{vV}, s{S_T0}, v{T2}')
    for t in range(1,8): a(f'v_xor_b32 v{vV+t}, {32*t}, v{vV}')
    a('s_waitcnt lgkmcnt(4)')
    for U in range(4):
        a(f'v_mfma_f32_16x16x32_bf16 v[{S}:{S+3}], v[{KF+U*4}:{KF+U*4+3}], v[{QF+4*U}:{QF+4*U+3}], '+('0' if U==0 else f'v[{S}:{S+3}]'))
    for U in range(4): a(f'ds_read_b128 v[{KF+(8+U)*4}:{KF+(8+U)*4+3}], v{vK+U} offset:8192')
    a('s_waitcnt lgkmcnt(4)')
    for U in range(4):
        a(f'v_mfma_f32_16x16x32_bf16 v[{S+4}:{S+7}], v[{KF+(4+U)*4}:{KF+(4+U)*4+3}], v[{QF+4*U}:{QF+4*U+3}], '+('0' if U==0 else f'v[{S+4}:{S+7}]'))
    a('s_waitcnt lgkmcnt(0)')
    for U in range(4):
        a(f'v_mfma_f32_16x16x32_bf16 v[{S+8}:{S+11}], v[{KF+(8+U)*4}:{KF+(8+U)*4+3}], v[{QF+4*U}:{QF+4*U+3}], '+('0' if U==0 else f'v[{S+8}:{S+11}]'))
    def vreads(ts):
        for t in ts:
            a(f'ds_read_b64_tr_b16 v[{VF32+4*t}:{VF32+4*t+1}], v{vV+t}')
            a(f'ds_read_b64_tr_b16 v[{VF32+4*t+2}:{VF32+4*t+3}], v{vV+t} offset:4096')
            a(f'ds_read_b64_tr_b16 v[{VF16+2*t}:{VF16+2*t+1}], v{vV+t} offset:8192')
    vreads(range(0,4))
    for p in range(6): a(f'v_cvt_pk_bf16_f32 v{TP+p}, v{S+2*p}, v{S+2*p+1}')
    for p in range(6):
        a(f'v_lshlrev_b32 v{X+2*p}, 16, v{TP+p}')
        a(f'v_and_b32 v{X+2*p+1}, 0xffff0000, v{TP+p}')
    for i in range(12): a(f'v_mul_f32 v{X+i}, {SCALE}, v{X+i}')
    for p in range(6): a(f'v_cvt_pk_bf16_f32 v{TP+p}, v{X+2*p}, v{X+2*p+1}')
    for p in range(6):
        a(f'v_lshlrev_b32 v{X+2*p}, 16, v{TP+p}')
        a(f'v_and_b32 v{X+2*p+1}, 0xffff0000, v{TP+p}')
    a('s_waitcnt lgkmcnt(0)')
    vreads(range(4,8))
    M=62; M2=63
    a(f'v_max3_f32 v{M}, v{X}, v{X+1}, v{X+2}')
    for i in range(3,11,2): a(f'v_max3_f32 v{M}, v{M}, v{X+i}, v{X+i+1}')
    a(f'v_max_f32 v{M}, v{M}, v{X+11}')
    for sw in ('v_permlane32_swap_b32','v_permlane16_swap_b32'):
        a(f'v_mov_b32 v{M2}, v{M}')
        a(f'{sw} v{M}, v{M2}')
        a(f'v_max_f32 v{M}, v{M}, v{M2}')
    a(f'v_mul_f32 v{M}, s{S_L2E}, v{M}')
    for i in range(12): a(f'v_fma_f32 v{X+i}, v{X+i}, s{S_L2E}, -v{M}')
    for i in range(12): a(f'v_exp_f32 v{X+i}, v{X+i}')
    SM=64
    a(f'v_add_f32 v{SM}, v{X}, v{X+1}')
    for i in range(2,12): a(f'v_add_f32 v{SM}, v{SM}, v{X+i}')
    for sw in ('v_permlane32_swap_b32','v_permlane16_swap_b32'):
        a(f'v_mov_b32 v{M2}, v{SM}')
        a(f'{sw} v{SM}, v{M2}')
        a(f'v_add_f32 v{SM}, v{SM}, v{M2}')
    a(f'v_rcp_f32 v{SM}, v{SM}')
    for i in range(12): a(f'v_mul_f32 v{X+i}, v{X+i}, v{SM}')
    for p in range(6): a(f'v_cvt_pk_bf16_f32 v{PP+p}, v{X+2*p}, v{X+2*p+1}')
    a('s_waitcnt lgkmcnt(0)')
    for t in range(8):
        a(f'v_mfma_f32_16x16x32_bf16 v[{OA+4*t}:{OA+4*t+3}], v[{VF32+4*t}:{VF32+4*t+3}], v[{PP}:{PP+3}], 0')
    for t in range(8):
        a(f'v_mfma_f32_16x16x16_bf16 v[{OA+4*t}:{OA+4*t+3}], v[{VF16+2*t}:{VF16+2*t+1}], v[{PP+4}:{PP+5}], v[{OA+4*t}:{OA+4*t+3}]')
    a(f's_lshl_b32 s{S_T0}, s{S_BP}, 5')
    a(f's_add_u32 s{S_T0}, s{S_T0}, s{S_HEAD}')
    a(f's_mul_i32 s{S_T0}, s{S_T0}, 24576')
    a(f's_mul_i32 s{S_T1}, s{S_BB}, 6144')
    a(f's_lshl_b32 s{S_T2}, s{S_MT}, 11')
    a(f's_add_u32 s{S_T1}, s{S_T1}, s{S_T2}')
    a(f's_add_u32 s{S_T0}, s{S_T0}, s{S_T1}')
    a(f's_add_u32 s{S_T2}, s{S_T0}, 12288')
    a(f'v_lshlrev_b32 v{vQ}, 4, v0')
    a(f'v_add_u32 v{vK}, s{S_T1}, v{vQ}')
    a(f'v_add_u32 v{vK+1}, {STAGE}, v{vK}')
    for u in range(4):
        for h2 in range(2):
            t=2*u+h2
            a(f'v_cvt_pk_bf16_f32 v{OP+4*u+2*h2}, v{OA+4*t}, v{OA+4*t+1}')
            a(f'v_cvt_pk_bf16_f32 v{OP+4*u+2*h2+1}, v{OA+4*t+2}, v{OA+4*t+3}')
        off=f' offset:{(u&1)*1024}' if u&1 else ''
        a(f'buffer_store_dwordx4 v[{OP+4*u}:{OP+4*u+3}], v{vQ}, s[{R_WS}:{R_WS+3}], s{S_T0 if u<2 else S_T2} offen{off} sc1')
        a(f'ds_write_b128 v{vK+(u>>1)}, v[{OP+4*u}:{OP+4*u+3}]{off}')
    a(f's_lshl_b32 s{S_T0}, s{S_KS}, 3')
    a(f's_add_u32 s{S_T0}, s{S_T0}, s{S_BP}')
    a(f's_lshl_b32 s{S_T0}, s{S_T0}, 9')
    a(f's_lshl_b32 s{S_T1}, s{S_NT}, 6')
    a(f's_add_u32 s{S_T0}, s{S_T0}, s{S_T1}')
    a(f's_lshl_b32 s{S_T1}, s{S_W}, 3')
    a(f's_add_u32 s{S_T0}, s{S_T0}, s{S_T1}')
    a(f's_add_u32 s{S_KVM}, s{S_T0}, {WS_FO}')
    a(f'v_mov_b32 v{T5}, 0')
    stamp(a,5)
    a(f's_cmp_ge_u32 s{S_W}, 4')
    a('s_cbranch_scc1 L_ld45')
    a.c('==== consumer P2')
    a(f's_mul_i32 s{S_T0}, s{S_WM}, 6144')
    a(f'v_lshl_add_u32 v12, v0, 4, s{S_T0}')
    a('v_add_u32 v13, 1024, v12')
    a(f'v_add_u32 v14, {2*STAGE}, v12')
    a(f'v_add_u32 v15, {2*STAGE}, v13')
    baddr_calc(a,True)
    a('s_waitcnt lgkmcnt(0)')
    a('s_barrier')
    stamp(a,6)
    if OPT['stamps']: a('s_waitcnt lgkmcnt(0)')
    def sig():
        a('s_waitcnt vmcnt(0)')
        flag_store(a,S_KVM,T5)
        stamp(a,7)
    consumer_loop(a, prebar={1:sig})
    stamp(a,8)
    a.c('partials')
    a(f's_lshl_b32 s{S_T3}, s{S_NT}, 3')
    a(f's_add_u32 s{S_T3}, s{S_T3}, s{S_BP}')
    a('v_lshlrev_b32 v1, 4, v0')
    for t in range(1,4):
        a(f's_add_u32 s{S_T0}, s{S_KS}, {t}')
        a(f's_and_b32 s{S_T0}, s{S_T0}, 3')
        a(f's_lshl_b32 s{S_T1}, s{S_T3}, 2')
        a(f's_add_u32 s{S_T0}, s{S_T0}, s{S_T1}')
        a(f's_lshl_b32 s{S_T0}, s{S_T0}, 2')
        a(f's_add_u32 s{S_T0}, s{S_T0}, s{S_W}')
        a(f's_mul_i32 s{S_T0}, s{S_T0}, 9216')
        a(f's_add_u32 s{S_T0}, s{S_T0}, {WS_P+(t-1)*3072}')
        for mt in range(3):
            ac=ACC+(t*3+mt)*4
            off=f' offset:{mt*1024}' if mt else ''
            a(f'buffer_store_dwordx4 v[{ac}:{ac+3}], v1, s[{R_WS}:{R_WS+3}], s{S_T0} offen{off} sc1')
    a(f's_lshl_b32 s{S_T0}, s{S_T3}, 7')
    a(f's_lshl_b32 s{S_T1}, s{S_W}, 5')
    a(f's_add_u32 s{S_T0}, s{S_T0}, s{S_T1}')
    a(f's_add_u32 s{S_T2}, s{S_T0}, {WS_FP}')
    a(f's_lshl_b32 s{S_T1}, s{S_KS}, 3')
    a(f's_add_u32 s{S_KVM}, s{S_T2}, s{S_T1}')
    a('v_and_b32 v2, 3, v0')
    a('v_lshlrev_b32 v2, 3, v2')
    a(f's_lshl_b32 s{S_T1}, s{S_T3}, 2')
    a(f's_add_u32 s{S_T1}, s{S_T1}, s{S_KS}')
    a(f's_lshl_b32 s{S_T1}, s{S_T1}, 2')
    a(f's_add_u32 s{S_T1}, s{S_T1}, s{S_W}')
    a(f's_mul_i32 s{S_T1}, s{S_T1}, 9216')
    a(f's_add_u32 s{S_AO}, s{S_T1}, {WS_P}')
    a(f's_mul_i32 s{S_T0}, s{S_BP}, 96')
    a(f's_mul_i32 s{S_T1}, s{S_WM}, 48')
    a(f's_add_u32 s{S_T0}, s{S_T0}, s{S_T1}')
    a(f's_lshl_b32 s{S_T0}, s{S_T0}, 11')
    a(f's_lshl_b32 s{S_T1}, s{S_NT}, 8')
    a(f's_add_u32 s{S_T0}, s{S_T0}, s{S_T1}')
    a(f's_lshl_b32 s{S_T1}, s{S_WN}, 7')
    a(f's_add_u32 s{S_T0}, s{S_T0}, s{S_T1}')
    a(f's_lshl_b32 s{S_T1}, s{S_KS}, 5')
    a(f's_add_u32 s{S_BO}, s{S_T0}, s{S_T1}')
    a(f'v_lshlrev_b32 v3, 11, v{V_M}')
    a(f'v_lshl_add_u32 v3, v{V_G}, 3, v3')
    a('s_waitcnt vmcnt(0)')
    flag_store(a,S_KVM,T5)
    stamp(a,9)
    poll(a,'p',2,S_T2,4)
    stamp(a,10)
    R=80
    for t in range(3):
        a(f's_add_u32 s{S_T0}, s{S_AO}, {t*3072}')
        for mt in range(3):
            r=R+(t*3+mt)*4
            off=f' offset:{mt*1024}' if mt else ''
            a(f'buffer_load_dwordx4 v[{r}:{r+3}], v1, s[{R_WS}:{R_WS+3}], s{S_T0} offen{off} sc1')
    for mt in range(3):
        ac=ACC+mt*4
        if mt==0: a('s_waitcnt vmcnt(0)')
        for e in range(4):
            a(f'v_add_f32 v{ac+e}, v{ac+e}, v{R+(0*3+mt)*4+e}')
            a(f'v_add_f32 v{ac+e}, v{ac+e}, v{R+(1*3+mt)*4+e}')
            a(f'v_add_f32 v{ac+e}, v{ac+e}, v{R+(2*3+mt)*4+e}')
        a(f'v_cvt_pk_bf16_f32 v{ac}, v{ac}, v{ac+1}')
        a(f'v_cvt_pk_bf16_f32 v{ac+1}, v{ac+2}, v{ac+3}')
        a(f'buffer_store_dwordx2 v[{ac}:{ac+1}], v3, s[{R_OUT}:{R_OUT+3}], s{S_BO} offen')
        if mt<2: a(f's_add_u32 s{S_BO}, s{S_BO}, {16*2048}')
    if OPT['stamps']==3:
        a('s_waitcnt vmcnt(0)')
        stamp(a,11)
        a('s_waitcnt lgkmcnt(0)')
        a(f's_xor_b32 s{S_T0}, s2, {OPT["dbgwg"]}')
        a(f's_or_b32 s{S_T0}, s{S_T0}, s{S_W}')
        a(f's_cmp_eq_u32 s{S_T0}, 0')
        a('s_cbranch_scc0 L_end')
        a('v_mov_b32 v2, 0')
        for j in range(NST):
            a(f's_sub_u32 s{S_T0}, s{S_ST+2*j}, s{S_N}')
            a(f'v_mov_b32 v4, s{S_T0}')
            a(f'buffer_store_dword v4, v2, s[{R_DBG}:{R_DBG+3}], 0 offen offset:{8+4*j}')
            a('s_nop 1')
    elif OPT['stamps']:
        a('s_waitcnt vmcnt(0)')
        stamp(a,11)
        a(f's_cmp_eq_u32 s{S_W}, 0')
        a('s_cbranch_scc0 L_end')
        stamp_flush(a,'c',0)
    a('s_endpgm')
    a.label('L_ld45')
    a('s_waitcnt vmcnt(0) lgkmcnt(0)')
    flag_store(a,S_KVM,T5)
    a('s_branch L_ldbx')
    a.label('L_pref')
    a(f's_lshl_b32 s{S_T0}, s{S_NT}, 7')
    a(f's_mul_i32 s{S_T1}, s{S_BP}, 96')
    a(f's_add_u32 s{S_T0}, s{S_T0}, s{S_T1}')
    a(f's_sub_u32 s{S_T1}, s{S_W}, 6')
    a(f's_mul_i32 s{S_T1}, s{S_T1}, 48')
    a(f's_add_u32 s{S_T0}, s{S_T0}, s{S_T1}')
    a(f's_add_u32 s{S_T0}, s{S_T0}, 256')
    a(f'v_lshlrev_b32 v{T0}, 11, v{V_G}')
    a(f'v_lshl_add_u32 v{T0}, v{V_M}, 4, v{T0}')
    for k in range(12):
        a(f's_and_b32 s{S_T1}, s{S_T0}, 1023')
        a(f's_lshl_b32 s{S_T1}, s{S_T1}, 11')
        a(f'buffer_load_dwordx4 v[{V_JUNK}:{V_JUNK+3}], v{T0}, s[{R_WO}:{R_WO+3}], s{S_T1} offen')
        if k<11: a(f's_add_u32 s{S_T0}, s{S_T0}, 4')
    a('s_waitcnt vmcnt(12)')
    a.label('L_ldbx')
    a.c('==== loader P2')
    vm=VM(a)
    a(f's_sub_u32 s{S_LI}, s{S_W}, 4')
    a(f'v_lshlrev_b32 v1, 4, v0')
    a(f's_mul_i32 s{S_T0}, s{S_LI}, 3072')
    a(f'v_add_u32 v1, s{S_T0}, v1')
    a(f's_lshl_b32 s{S_T0}, s{S_BP}, 5')
    a(f's_lshl_b32 s{S_T1}, s{S_KS}, 3')
    a(f's_add_u32 s{S_T0}, s{S_T0}, s{S_T1}')
    a(f's_mul_i32 s{S_T3}, s{S_T0}, 24576')
    a(f'v_lshrrev_b32 v2, 3, v0')
    a(f'v_and_b32 v3, 7, v0')
    a(f'v_min_u32 v3, 5, v3')
    a(f'v_lshlrev_b32 v3, 3, v3')
    a(f'v_lshl_add_u32 v2, v2, 6, v3')
    a(f's_lshl_b32 s{S_T0}, s{S_KS}, 3')
    a(f's_add_u32 s{S_T0}, s{S_T0}, s{S_BP}')
    a(f's_lshl_b32 s{S_T0}, s{S_T0}, 9')
    a(f's_add_u32 s{S_KVM}, s{S_T0}, {WS_FO}')
    fstamp(a,'preBX')
    a('s_barrier')
    stamp(a,6)
    fstamp(a,'BX')
    a('s_barrier')
    fstamp(a,'2B0')
    poll(a,'o',2,S_KVM,12)
    stamp(a,7)
    fstamp(a,'poll')
    def offs(st):
        a(f's_lshl_b32 s{S_T0}, s{S_NT}, 1')
        a(f's_add_u32 s{S_T0}, s{S_T0}, {st}')
        a(f's_and_b32 s{S_T0}, s{S_T0}, 15')
        a(f's_lshl_b32 s{S_BO}, s{S_T0}, 17')
        a(f's_mul_i32 s{S_AO}, s{S_T0}, 12288')
        a(f's_add_u32 s{S_AO}, s{S_AO}, s{S_T3}')
    VA2=[1,1,1]
    offs(2); issueA(R_WS,VA2,2,2,' sc1')
    offs(3); issueA(R_WS,VA2,3,3,' sc1')
    offs(4); issueA(R_WS,VA2,4,4,' sc1'); issueB(R_WO,V_B2,4,4)
    for st in range(1,16):
        if st<15: vm.wait(st+1)
        fstamp(a,f'2w{st+1}')
        a('s_barrier')
        fstamp(a,f'2B{st}')
        if st==1: stamp(a,8)
        if st+4<16:
            offs(st+4); issueA(R_WS,VA2,st+4,st+4,' sc1'); issueB(R_WO,V_B2,st+4,st+4)
    fstamp_flush(a)
    if OPT['stamps'] in (1,2):
        stamp(a,9)
        a(f's_cmp_eq_u32 s{S_W}, 4')
        a('s_cbranch_scc0 L_end')
        stamp_flush(a,'l',1)
    a.label('L_end')
    a('s_endpgm')
    return a

def kd(name, vg):
    return f""".p2align 6
.amdhsa_kernel {name}
  .amdhsa_next_free_vgpr {vg}
  .amdhsa_next_free_sgpr 100
  .amdhsa_accum_offset {vg}
  .amdhsa_group_segment_fixed_size 0
  .amdhsa_kernarg_size 64
  .amdhsa_user_sgpr_count 2
  .amdhsa_user_sgpr_kernarg_segment_ptr 1
  .amdhsa_system_sgpr_workgroup_id_x 1
.end_amdhsa_kernel
"""

def build():
    ref=open('cdna_kernels/'+NAME+'.s.ref').read().split('\n')
    hdr=[l for l in ref if l.startswith(';') and '@launch' not in l and 'Override' not in l and 'grid=ceil' not in l]
    out='\n'.join(hdr[:9])+'\n'
    if OPT['aslist']:
        global K
        K='mha_fused_kernel'
        if OPT['aslist']==3: out+='; @launch kernel=mha_empty_kernel grid=(256,1,1) block=(256,1,1) lds=0\n'
        out+='; @launch kernel=mha_fused_kernel grid=(256,1,1) block=(512,1,1) lds=163840\n'
        if OPT['aslist']==2: out+='; @launch kernel=mha_fused_kernel grid=(256,1,1) block=(512,1,1) lds=163840\n'
    else:
        out+='; @launch grid=(256,1,1) block=(512,1,1) lds=163840\n'
    out+='.amdgcn_target "amdgcn-amd-amdhsa--gfx950"\n.text\n'
    out+=build_kernel().text()
    if OPT['aslist']==3:
        out+='.globl mha_empty_kernel\n.p2align 8\n.type mha_empty_kernel,@function\nmha_empty_kernel:\n  s_endpgm\n'
    out+='.section .rodata,"a"\n'
    out+=kd(K,256)
    if OPT['aslist']==3: out+=kd('mha_empty_kernel',8)
    return out

if __name__=='__main__':
    dst='cdna_kernels/'+NAME+'.s'
    for x in sys.argv[1:]:
        if '=' in x:
            k,v=x.split('='); OPT[k]=int(v)
        else: dst=x
    open(dst,'w').write(build())
    if '_names' in OPT: open(dst+'.names','w').write('\n'.join(OPT['_names'])+'\n')
    print('wrote',dst)
```

```python
import sys
from asmlib import Asm

NAME='standalone__mha_block_cached__near_ridge'
K=NAME+'_kernel'
STAGE=28672
KVBASE=4*STAGE
WS_O=0
WS_P=8<<20
WS_FO=20<<20
WS_FP=(20<<20)+65536
SZ_WS=21<<20
SZ_X=768*2048; SZ_W=1024*8192; SZ_KV=16*32*12288; SZ_OUT=768*2048
SCALE='0x3db504f3'; LOG2E='0x3fb8aa3b'
SPIN=1<<15

OPT=dict(stamps=0, kvnt=1, rot=1, kvst=0, prio=0, npro=3, dbgwg=0, aslist=0, kvmode=0, front=0, nomfma=0, noa=0, lprio=0, fall=0, nob=0, nords=0)

V_A=[1,2,3]; V_B=[4,5,6,7]; V_B2=[8,9,10,11]
V_KV=[8,9,10,11]
V_AADDR=[[12,13],[14,15]]; V_BADDR=[[16,17,18,19],[20,21,22,23]]
V_G=24; V_M=25
T0=26; T1=27; T2=28; T3=29; T4=30; T5=31
ACC=32; FA=80; FB=104
V_N=140
V_JUNK=252
S_XP=4; S_KP=6; S_VP=8; S_WQP=10; S_WOP=12; S_OUTP=14; S_DBGP=16; S_WSP=18
R_X=20; R_WQ=24; R_KV=28; R_WS=32; R_WO=84; R_OUT=88; R_DBG=92
S_W=36; S_HEAD=37; S_BP=38; S_KS=39; S_NT=40
S_AO=41; S_BO=42; S_M0A=43; S_M0B=44
S_T0=45; S_T1=46; S_T2=47; S_KVM=48; S_T3=49; S_WM=50; S_WN=51
S_BB=52; S_MT=53; S_CUR=54; S_CNT=55; S_L2E=56; S_LI=57
S_N=58
S_ST=60
NST=12

def srd(a, d, base, size, add=None):
    if add is None:
        a(f's_mov_b32 s{d}, s{base}')
        a(f's_mov_b32 s{d+1}, s{base+1}')
        a(f's_mov_b32 s{d+2}, {size}')
    else:
        a(f's_add_u32 s{d}, s{base}, s{add}')
        a(f's_addc_u32 s{d+1}, s{base+1}, 0')
        a(f's_sub_u32 s{d+2}, {size}, s{add}')
    a(f's_mov_b32 s{d+3}, 0x20000')

def stamp(a,j):
    if OPT['stamps']: a(f's_memrealtime s[{S_ST+2*j}:{S_ST+2*j+1}]')
def stamp_flush(a,tag,li):
    if not OPT['stamps']: return
    a('s_waitcnt lgkmcnt(0)')
    a(f's_mov_b32 s{S_T0}, {(64<<20)+li*256*NST*8}')
    a(f's_mul_i32 s{S_T1}, s2, {NST*8}')
    a(f's_add_u32 s{S_T0}, s{S_T0}, s{S_T1}')
    srd(a,R_X,S_WSP,256<<20,S_T0)
    a('v_mov_b32 v2, 0')
    for j in range(NST):
        a(f'v_mov_b32 v4, s{S_ST+2*j}')
        a(f'v_mov_b32 v5, s{S_ST+2*j+1}')
        a(f'buffer_store_dwordx2 v[4:5], v2, s[{R_X}:{R_X+3}], 0 offen offset:{8*j}')
        a('s_nop 1')

FINE=[]
V_FS=200
def fstamp(a,name):
    if OPT['stamps']!=2: return
    if not OPT['fall'] and name not in ('start','B-1','B3','B7','B8','B11','B12','B15','preBX','BX','poll','2B1','2B2','2B12','2B15'): return
    i=len(FINE)
    if i>0:
        a('s_waitcnt lgkmcnt(0)')
        a(f'v_writelane_b32 v{V_FS+((i-1)>>6)}, s96, {(i-1)&63}')
    a('s_memrealtime s[96:97]')
    FINE.append(name)
def fstamp_flush(a):
    if OPT['stamps']!=2: return
    i=len(FINE)
    a('s_waitcnt lgkmcnt(0)')
    a(f'v_writelane_b32 v{V_FS+((i-1)>>6)}, s96, {(i-1)&63}')
    a(f's_cmp_eq_u32 s{S_W}, 6')
    a('s_cbranch_scc0 L_nofs')
    a(f's_mov_b32 s{S_T0}, {(65<<20)}')
    a(f's_lshl_b32 s{S_T1}, s2, 9')
    a(f's_add_u32 s{S_T0}, s{S_T0}, s{S_T1}')
    srd(a,R_X,S_WSP,256<<20,S_T0)
    a('v_lshlrev_b32 v2, 2, v0')
    a(f'buffer_store_dword v{V_FS}, v2, s[{R_X}:{R_X+3}], 0 offen')
    a(f'buffer_store_dword v{V_FS+1}, v2, s[{R_X}:{R_X+3}], 0 offen offset:256')
    a.label('L_nofs')
    OPT['_names']=list(FINE)

class VM:
    def __init__(s,a): s.a=a; s.q=[]
    def issue(s,text,tag):
        s.a(text); s.q.append(tag)
    def note(s,tag): s.q.append(tag)
    def wait(s,tag):
        if tag not in s.q: return
        idx=max(i for i,t in enumerate(s.q) if t==tag)
        n=len(s.q)-1-idx
        s.a(f's_waitcnt vmcnt({n})')
        del s.q[:idx+1]
    def waitall(s):
        s.a('s_waitcnt vmcnt(0)'); s.q=[]

def frag_reads(st,ks):
    if OPT['nords']: return []
    slot=st%4; se=slot>>1; so=(slot&1)*STAGE
    L=[]
    for mt in range(3):
        r=FA+(ks*3+mt)*4
        L.append(f'ds_read_b128 v[{r}:{r+3}], v{V_AADDR[se][ks]} offset:{so+mt*2048}')
    for t in range(4):
        r=FB+(ks*4+t)*4
        for hh in range(2):
            L.append(f'ds_read_b64_tr_b16 v[{r+2*hh}:{r+2*hh+1}], v{V_BADDR[se][t]} offset:{so+12288+ks*8192+hh*1024}')
    return L
def mfmas(ks, first):
    L=[]
    for t in range(4):
        for mt in range(3):
            ac=ACC+(t*3+mt)*4
            fa=FA+(ks*3+mt)*4; fb=FB+(ks*4+t)*4
            c='0' if first else f'v[{ac}:{ac+3}]'
            L.append(f'v_mfma_f32_16x16x32_bf16 v[{ac}:{ac+3}], v[{fb}:{fb+3}], v[{fa}:{fa+3}], {c}')
    return L
def interleave(a, M, others):
    n=len(M); k=len(others); j=0
    if OPT['nomfma']: M=['s_nop 0']*n
    for i,m in enumerate(M):
        a(m)
        tgt=min(k,((i+1)*k+n-1)//n) if i<n-1 else k
        if OPT['front']: tgt=min(k,(i+1)*OPT['front']) if i<n-1 else k
        while j<tgt:
            a(others[j]); j+=1

def consumer_loop(a, extra2=None, prebar=None, lastreads=False):
    for x in frag_reads(0,0): a(x)
    for st in range(16):
        a.c(f'---- stage {st}')
        a('s_waitcnt lgkmcnt(0)')
        interleave(a, mfmas(0, st==0), frag_reads(st,1))
        if prebar and st in prebar: prebar[st]()
        a('s_waitcnt lgkmcnt(0)')
        a('s_barrier')
        oth=frag_reads(st+1,0) if st<15 else []
        if extra2 and st in extra2:
            ex=extra2[st]
            oth=oth+ex
        interleave(a, mfmas(1,False), oth)

def baddr_calc(a, rot):
    a(f'v_lshrrev_b32 v{T0}, 2, v{V_M}')
    a(f'v_and_b32 v{T1}, 3, v0')
    a(f'v_lshl_add_u32 v{T2}, v{V_G}, 3, v{T0}')
    a(f'v_lshlrev_b32 v{T2}, 8, v{T2}')
    a(f'v_and_b32 v{T3}, 1, v{T1}')
    a(f'v_lshl_add_u32 v{T2}, v{T3}, 3, v{T2}')
    a(f'v_and_b32 v{T3}, 1, v{V_G}')
    a(f'v_lshlrev_b32 v{T3}, 3, v{T3}')
    a(f'v_lshl_add_u32 v{T3}, v{T0}, 1, v{T3}')
    a(f'v_lshrrev_b32 v{T1}, 1, v{T1}')
    a(f's_lshl_b32 s{S_T0}, s{S_WN}, 3')
    a(f'v_or_b32 v{T1}, s{S_T0}, v{T1}')
    for t in range(4):
        if rot:
            a(f's_add_u32 s{S_T0}, s{S_KS}, {t}')
            a(f's_and_b32 s{S_T0}, s{S_T0}, 3')
            a(f's_lshl_b32 s{S_T0}, s{S_T0}, 1')
            a(f'v_or_b32 v{T0}, s{S_T0}, v{T1}')
        else:
            a(f'v_or_b32 v{T0}, {2*t}, v{T1}')
        a(f'v_xor_b32 v{T0}, v{T0}, v{T3}')
        a(f'v_lshl_add_u32 v{V_BADDR[0][t]}, v{T0}, 4, v{T2}')
        a(f'v_add_u32 v{V_BADDR[1][t]}, {2*STAGE}, v{V_BADDR[0][t]}')

def late_srds(a):
    srd(a,R_WS,S_WSP,SZ_WS,None)
    srd(a,R_DBG,S_DBGP,256,None)
    srd(a,R_OUT,S_OUTP,SZ_OUT,None)
    a(f's_lshl_b32 s{S_T0}, s{S_KS}, 21')
    a(f's_lshl_b32 s{S_T1}, s{S_NT}, 8')
    a(f's_add_u32 s{S_T0}, s{S_T0}, s{S_T1}')
    srd(a,R_WO,S_WOP,SZ_W,S_T0)

def nonce_get(a, tag, vm_wait):
    vm_wait()
    a(f's_mov_b32 s{S_CNT}, {SPIN}')
    a.label(f'Ln_{tag}')
    a(f'v_readfirstlane_b32 s{S_N}, v{V_N}')
    a(f'v_readfirstlane_b32 s{S_N+1}, v{V_N+1}')
    a(f's_cmp_lg_u32 s{S_N+1}, 0')
    a(f's_cbranch_scc1 Lnd_{tag}')
    a(f's_sub_u32 s{S_CNT}, s{S_CNT}, 1')
    a(f's_cmp_eq_u32 s{S_CNT}, 0')
    a(f's_cbranch_scc1 Lnd_{tag}')
    a('s_sleep 2')
    a(f'v_mov_b32 v{T0}, 0')
    a(f'buffer_load_dwordx2 v[{V_N}:{V_N+1}], v{T0}, s[{R_DBG}:{R_DBG+3}], 0 offen sc1')
    a('s_waitcnt vmcnt(0)')
    a(f's_branch Ln_{tag}')
    a.label(f'Lnd_{tag}')

def poll(a, tag, voff, soff, vd):
    a(f's_mov_b32 s{S_CNT}, {SPIN}')
    a.label(f'Lp_{tag}')
    a(f'buffer_load_dwordx2 v[{vd}:{vd+1}], v{voff}, s[{R_WS}:{R_WS+3}], s{soff} offen sc1')
    a('s_waitcnt vmcnt(0)')
    a(f'v_cmp_ne_u64 vcc, s[{S_N}:{S_N+1}], v[{vd}:{vd+1}]')
    a(f's_cbranch_vccz Lpd_{tag}')
    a(f's_sub_u32 s{S_CNT}, s{S_CNT}, 1')
    a(f's_cmp_eq_u32 s{S_CNT}, 0')
    a(f's_cbranch_scc0 Lp_{tag}')
    a.label(f'Lpd_{tag}')

def flag_store(a, soff_reg, voff):
    a(f'v_mov_b32 v{V_N}, s{S_N}')
    a(f'v_mov_b32 v{V_N+1}, s{S_N+1}')
    a(f'buffer_store_dwordx2 v[{V_N}:{V_N+1}], v{voff}, s[{R_WS}:{R_WS+3}], s{soff_reg} offen sc1')

def build_kernel():
    a=Asm()
    a.raw(f'.globl {K}\n.p2align 8\n.type {K},@function\n{K}:')
    a('s_cmp_ge_u32 s2, 256')
    a('s_cbranch_scc1 L_end')
    a('s_load_dwordx16 s[4:19], s[0:1], 0')
    for j in range(NST): stamp(a,j)
    a('v_lshrrev_b32 v1, 6, v0')
    a('v_and_b32 v0, 63, v0')
    a(f'v_readfirstlane_b32 s{S_W}, v1')
    a(f'v_lshrrev_b32 v{V_G}, 4, v0')
    a(f'v_and_b32 v{V_M}, 15, v0')
    a(f's_and_b32 s{S_T0}, s2, 7')
    a(f's_lshr_b32 s{S_BP}, s2, 3')
    a(f's_and_b32 s{S_T1}, s{S_BP}, 3')
    a(f's_lshl_b32 s{S_HEAD}, s{S_T0}, 2')
    a(f's_add_u32 s{S_HEAD}, s{S_HEAD}, s{S_T1}')
    a(f's_lshr_b32 s{S_BP}, s{S_BP}, 2')
    a(f's_lshr_b32 s{S_KS}, s{S_HEAD}, 3')
    a(f's_and_b32 s{S_NT}, s{S_HEAD}, 7')
    a(f's_cmp_ge_u32 s{S_W}, 4')
    a('s_cbranch_scc0 L_cons1')
    a.c('==== loader P1')
    if OPT['stamps'] in (1,2): a(f's_memtime s[{S_ST+20}:{S_ST+21}]')
    if OPT['lprio']: a(f's_setprio {OPT["lprio"]}')
    vm=VM(a)
    a(f's_sub_u32 s{S_LI}, s{S_W}, 4')
    if OPT['rot']==2:
        a(f's_lshl_b32 s{S_CUR}, s{S_BP}, 1')
    elif OPT['rot']==3:
        a(f's_and_b32 s{S_CUR}, s{S_BP}, 3')
        a(f's_lshl_b32 s{S_CUR}, s{S_CUR}, 2')
    elif OPT['rot']==4:
        a(f's_and_b32 s{S_CUR}, s{S_BP}, 1')
        a(f's_lshl_b32 s{S_CUR}, s{S_CUR}, 3')
    elif OPT['rot']:
        a(f's_lshl_b32 s{S_CUR}, s{S_T1}, 1')
        a(f's_add_u32 s{S_CUR}, s{S_CUR}, s{S_BP}')
        a(f's_lshl_b32 s{S_CUR}, s{S_CUR}, 1')
        a(f's_and_b32 s{S_CUR}, s{S_CUR}, 15')
    else:
        a(f's_mov_b32 s{S_CUR}, 0')
    a(f'v_lshrrev_b32 v{T4}, 3, v0')
    a(f'v_and_b32 v{T5}, 7, v0')
    a(f's_mul_i32 s{S_T3}, s{S_LI}, 3')
    for ii in range(3):
        a(f's_add_u32 s{S_T0}, s{S_T3}, {ii}')
        a(f's_and_b32 s{S_T1}, s{S_T0}, 1')
        a(f's_lshl_b32 s{S_T1}, s{S_T1}, 2')
        a(f'v_or_b32 v{T0}, s{S_T1}, v{V_G}')
        a(f'v_xor_b32 v{T0}, v{T0}, v{T5}')
        a(f'v_lshlrev_b32 v{T0}, 4, v{T0}')
        a(f's_lshl_b32 s{S_T0}, s{S_T0}, 14')
        if ii: a(f's_sub_u32 s{S_T0}, s{S_T0}, {ii*1024}')
        a(f'v_lshlrev_b32 v{T1}, 11, v{T4}')
        a(f'v_add3_u32 v{V_A[ii]}, v{T0}, v{T1}, s{S_T0}')
    for hh in range(2):
        a(f'v_or_b32 v{T2+hh}, {hh<<2}, v{V_G}')
        a(f'v_lshlrev_b32 v{T2+hh}, 1, v{T2+hh}')
        a(f'v_xor_b32 v{T2+hh}, v{T2+hh}, v{V_M}')
        a(f'v_lshlrev_b32 v{T2+hh}, 4, v{T2+hh}')
    a(f'v_lshlrev_b32 v{T1}, 13, v{V_G}')
    for ii in range(4):
        a(f's_lshl_b32 s{S_T0}, s{S_LI}, 17')
        if ii: a(f's_add_u32 s{S_T0}, s{S_T0}, {ii*4*8192-ii*1024}')
        a(f'v_add3_u32 v{V_B[ii]}, v{T2+(ii>>1)}, v{T1}, s{S_T0}')
    a(f's_mul_i32 s{S_M0A}, s{S_LI}, 3072')
    a(f's_lshl_b32 s{S_M0B}, s{S_LI}, 12')
    a(f's_add_u32 s{S_M0B}, s{S_M0B}, 12288')
    a(f's_lshl_b32 s{S_AO}, s{S_CUR}, 7')
    a(f's_lshl_b32 s{S_BO}, s{S_CUR}, 19')
    a('s_waitcnt lgkmcnt(0)')
    a(f's_mul_i32 s{S_T0}, s{S_BP}, 196608')
    srd(a,R_X,S_XP,SZ_X,S_T0)
    a(f's_lshl_b32 s{S_T0}, s{S_HEAD}, 8')
    srd(a,R_WQ,S_WQP,SZ_W,S_T0)
    def issueA(rs,va,st,tag,aux=''):
        slot=st%4
        if OPT['noa'] and st>=4: return
        a(f's_add_u32 m0, s{S_M0A}, {slot*STAGE}')
        for ii in range(3):
            off=f' offset:{ii*1024}' if ii else ''
            vm.issue(f'buffer_load_dwordx4 v{va[ii]}, s[{rs}:{rs+3}], s{S_AO} offen{off}{aux} lds',tag)
    def issueB(rs,vb,st,tag,aux=''):
        slot=st%4
        if OPT['nob'] and isinstance(tag,int) and st>=4:
            vm.note(tag); vm.q.pop();
            return
        a(f's_add_u32 m0, s{S_M0B}, {slot*STAGE}')
        for ii in range(4):
            off=f' offset:{ii*1024}' if ii else ''
            vm.issue(f'buffer_load_dwordx4 v{vb[ii]}, s[{rs}:{rs+3}], s{S_BO} offen{off}{aux} lds',tag)
    def adv1():
        a(f's_add_u32 s{S_AO}, s{S_AO}, 128')
        a(f's_and_b32 s{S_AO}, s{S_AO}, 2047')
        a(f's_lshl_b32 s{S_BO}, s{S_AO}, 12')
    fstamp(a,'start')
    NPRO=OPT['npro']
    for st in range(NPRO):
        issueA(R_X,V_A,st,st); issueB(R_WQ,V_B,st,st); adv1()
        fstamp(a,f'pro{st}')
    stamp(a,1)
    late_srds(a)
    a(f'v_lshlrev_b32 v{T1}, 11, v{V_G}')
    a(f's_lshr_b32 s{S_T1}, s{S_LI}, 1')
    a(f's_lshl_b32 s{S_T1}, s{S_T1}, 5')
    a(f's_and_b32 s{S_T2}, s{S_LI}, 1')
    a(f's_lshl_b32 s{S_T2}, s{S_T2}, 3')
    a(f's_add_u32 s{S_T1}, s{S_T1}, s{S_T2}')
    a(f's_lshl_b32 s{S_T1}, s{S_T1}, 11')
    for ii in range(4):
        c=(16*(ii&1)+4*(ii>>1))*2048-ii*1024
        a(f's_add_u32 s{S_T0}, s{S_T1}, {c}' if c>=0 else f's_sub_u32 s{S_T0}, s{S_T1}, {-c}')
        a(f'v_add3_u32 v{V_B2[ii]}, v{T2+(ii>>1)}, v{T1}, s{S_T0}')
    vm.wait(0)
    fstamp(a,'w0')
    a('s_barrier')
    stamp(a,2)
    fstamp(a,'B-1')
    for st in range(NPRO,4):
        issueA(R_X,V_A,st,st); issueB(R_WQ,V_B,st,st); adv1()
    def wo_off(st):
        a(f's_lshl_b32 s{S_T0}, s{S_NT}, 1')
        a(f's_add_u32 s{S_T0}, s{S_T0}, {st}')
        a(f's_and_b32 s{S_T0}, s{S_T0}, 15')
        a(f's_lshl_b32 s{S_BO}, s{S_T0}, 17')
        return S_T0
    for st in range(16):
        if st<15: vm.wait(st+1)
        fstamp(a,f'w{st+1}')
        a('s_barrier')
        fstamp(a,f'B{st}')
        if st<12:
            issueA(R_X,V_A,st+4,st+4); issueB(R_WQ,V_B,st+4,st+4); adv1()
        else:
            if st==12:
                a(f'v_mov_b32 v{T0}, 0')
                vm.issue(f'buffer_load_dwordx2 v[{V_N}:{V_N+1}], v{T0}, s[{R_DBG}:{R_DBG+3}], 0 offen sc1','n')
            wo_off(st-12)
            issueB(R_WO,V_B2,st-12,('p',st-12))
    stamp(a,3)
    nonce_get(a,'l',lambda: vm.wait('n'))
    a('s_branch L_bq')
    ldq=list(vm.q)
    a.label('L_cons1')
    a.c('==== consumer P1')
    if OPT['prio']: a(f's_setprio {OPT["prio"]}')
    a(f's_and_b32 s{S_WM}, s{S_W}, 1')
    a(f's_lshr_b32 s{S_WN}, s{S_W}, 1')
    a(f'v_lshrrev_b32 v{T0}, 1, v{V_M}')
    a(f'v_xor_b32 v{T0}, v{T0}, v{V_G}')
    a(f'v_lshlrev_b32 v{T0}, 4, v{T0}')
    a(f's_mul_i32 s{S_T0}, s{S_WM}, 6144')
    a(f'v_lshl_add_u32 v{T1}, v{V_M}, 7, s{S_T0}')
    a(f'v_add_u32 v12, v{T0}, v{T1}')
    a('v_xor_b32 v13, 64, v12')
    a(f'v_add_u32 v14, {2*STAGE}, v12')
    a(f'v_add_u32 v15, {2*STAGE}, v13')
    baddr_calc(a,False)
    a(f's_cmp_ge_u32 s{S_W}, 2')
    a('s_cbranch_scc1 L_kvV')
    for i in range(4):
        a(f'v_or_b32 v{T0}, {i<<2}, v{V_G}')
        a(f'v_xor_b32 v{T0}, v{T0}, v{V_M}')
        a(f'v_lshlrev_b32 v{T0}, 4, v{T0}')
        a(f'v_lshl_add_u32 v{V_KV[i]}, v{V_G}, 8, v{T0}')
    a('s_branch L_kvdone')
    a.label('L_kvV')
    for i in range(4):
        a(f'v_or_b32 v{T0}, {(i&1)<<2}, v{V_G}')
        a(f'v_lshlrev_b32 v{T0}, 1, v{T0}')
        a(f'v_xor_b32 v{T0}, v{T0}, v{V_M}')
        a(f'v_lshlrev_b32 v{T0}, 4, v{T0}')
        a(f'v_lshl_add_u32 v{V_KV[i]}, v{V_G}, 8, v{T0}')
    a.label('L_kvdone')
    a(f's_mul_i32 s{S_KVM}, s{S_W}, 12288')
    a(f's_add_u32 s{S_KVM}, s{S_KVM}, {KVBASE}')
    a('s_waitcnt lgkmcnt(0)')
    a(f's_lshl_b32 s{S_T0}, s{S_BP}, 1')
    a(f's_add_u32 s{S_T0}, s{S_T0}, s{S_WM}')
    a(f's_lshl_b32 s{S_T0}, s{S_T0}, 5')
    a(f's_add_u32 s{S_T0}, s{S_T0}, s{S_HEAD}')
    a(f's_mul_i32 s{S_T0}, s{S_T0}, 12288')
    a(f's_cmp_ge_u32 s{S_W}, 2')
    a(f's_cselect_b32 s{S_T1}, s{S_VP}, s{S_KP}')
    a(f's_cselect_b32 s{S_T2}, s{S_VP+1}, s{S_KP+1}')
    srd(a,R_KV,S_T1,SZ_KV,S_T0)
    late_srds(a)
    a(f's_or_b32 s{S_T0}, s2, s{S_W}')
    a(f's_cmp_lg_u32 s{S_T0}, 0')
    a('s_cbranch_scc1 L_nonon')
    a(f's_memrealtime s[{S_N}:{S_N+1}]')
    a('s_waitcnt lgkmcnt(0)')
    a(f's_or_b32 s{S_N+1}, s{S_N+1}, 0x80000000')
    a(f'v_mov_b32 v{V_N}, s{S_N}')
    a(f'v_mov_b32 v{V_N+1}, s{S_N+1}')
    a(f'v_mov_b32 v{T0}, 0')
    a(f'buffer_store_dwordx2 v[{V_N}:{V_N+1}], v{T0}, s[{R_DBG}:{R_DBG+3}], 0 offen sc1')
    a.label('L_nonon')
    kvnt=' nt' if OPT['kvnt'] else ''
    def kvpair(p):
        grp=p>>1; L=[]
        L.append(f's_add_u32 m0, s{S_KVM}, {grp*4096}')
        L.append(f's_mov_b32 s{S_T3}, {grp*4096}')
        for i in (2*(p&1),2*(p&1)+1):
            off=f' offset:{i*1024}' if i else ''
            L.append(f'buffer_load_dwordx4 v{V_KV[i]}, s[{R_KV}:{R_KV+3}], s{S_T3} offen{off}{kvnt} lds')
        return L
    if OPT['kvmode']==1:
        for p in range(6):
            for x in kvpair(p): a(x)
    stamp(a,1)
    a('s_barrier')
    stamp(a,2)
    if OPT['stamps']: a('s_waitcnt lgkmcnt(0)')
    ex={}
    k0=OPT['kvst']
    if OPT['kvmode']==0:
        for p in range(6): ex[k0+p]=kvpair(p)
        nst=k0+6
    elif OPT['kvmode']==2:
        ex[k0]=sum((kvpair(p) for p in range(6)),[])
        nst=max(k0+1,6)
    elif OPT['kvmode']==3:
        ex[k0]=sum((kvpair(p) for p in range(3)),[])
        ex[k0+1]=sum((kvpair(p) for p in range(3,6)),[])
        nst=max(k0+2,6)
    else:
        nst=6
    nst=min(nst,15)
    ex.setdefault(nst,[])
    ex[nst]+= [f'v_mov_b32 v{T0}, 0', f'buffer_load_dwordx2 v[{V_N}:{V_N+1}], v{T0}, s[{R_DBG}:{R_DBG+3}], 0 offen sc1']
    consumer_loop(a, extra2=ex)
    stamp(a,3)
    a.c('Q to LDS')
    a(f's_mul_i32 s{S_T0}, s{S_WM}, {STAGE}')
    a(f's_lshl_b32 s{S_T1}, s{S_WN}, 11')
    a(f's_add_u32 s{S_T0}, s{S_T0}, s{S_T1}')
    a(f's_add_u32 s{S_T0}, s{S_T0}, {2*STAGE}')
    a(f'v_lshrrev_b32 v1, 1, v{V_G}')
    a('v_lshlrev_b32 v1, 8, v1')
    a(f'v_and_b32 v2, 1, v{V_G}')
    a('v_lshl_add_u32 v1, v2, 3, v1')
    a(f'v_lshl_add_u32 v1, v{V_M}, 4, v1')
    a(f'v_add_u32 v1, s{S_T0}, v1')
    for t in range(4):
        for mt in range(3):
            ac=ACC+(t*3+mt)*4
            r=FA+((t*3+mt)%6)*2
            a(f'v_cvt_pk_bf16_f32 v{r}, v{ac}, v{ac+1}')
            a(f'v_cvt_pk_bf16_f32 v{r+1}, v{ac+2}, v{ac+3}')
            a(f'ds_write_b64 v1, v[{r}:{r+1}] offset:{mt*4096+(t>>1)*1024+(t&1)*512}')
    nonce_get(a,'c',lambda: a('s_waitcnt vmcnt(0)'))
    a('s_waitcnt lgkmcnt(0)')
    a.label('L_bq')
    a('s_barrier')
    stamp(a,4)
    a('s_waitcnt lgkmcnt(0)')
    a(f's_cmp_ge_u32 s{S_W}, 6')
    a('s_cbranch_scc1 L_pref')
    AV=240
    a(f's_mov_b32 s{S_L2E}, {LOG2E}')
    a(f's_cmp_ge_u32 s{S_W}, 3')
    a(f's_cselect_b32 s{S_BB}, 1, 0')
    a(f's_mul_i32 s{S_MT}, s{S_BB}, 3')
    a(f's_sub_u32 s{S_MT}, s{S_W}, s{S_MT}')
    a(f's_mul_i32 s{S_T0}, s{S_BB}, {STAGE}')
    a(f's_lshl_b32 s{S_T1}, s{S_MT}, 12')
    a(f's_add_u32 s{S_T0}, s{S_T0}, s{S_T1}')
    a(f's_add_u32 s{S_T0}, s{S_T0}, {2*STAGE}')
    vQ=AV; vK=AV+1; vV=AV+5
    a(f'v_lshl_add_u32 v{vQ}, v0, 4, s{S_T0}')
    a(f's_mul_i32 s{S_T0}, s{S_BB}, 12288')
    a(f's_add_u32 s{S_T0}, s{S_T0}, {KVBASE}')
    a(f'v_xor_b32 v{vK}, v{V_G}, v{V_M}')
    a(f'v_lshlrev_b32 v{vK}, 4, v{vK}')
    a(f'v_lshl_add_u32 v{vK}, v{V_M}, 8, v{vK}')
    a(f'v_add_u32 v{vK}, s{S_T0}, v{vK}')
    a(f'v_xor_b32 v{vK+1}, 64, v{vK}')
    a(f'v_xor_b32 v{vK+2}, 0x80, v{vK}')
    a(f'v_xor_b32 v{vK+3}, 0xc0, v{vK}')
    QF=80; KF=96; S=32; X=44; TP=56; PP=68; VF32=192; VF16=224; OA=144; OP=176
    for U in range(4): a(f'ds_read_b128 v[{QF+4*U}:{QF+4*U+3}], v{vQ} offset:{U*1024}')
    for t in range(2):
        for U in range(4): a(f'ds_read_b128 v[{KF+(t*4+U)*4}:{KF+(t*4+U)*4+3}], v{vK+U} offset:{t*4096}')
    a(f'v_lshrrev_b32 v{T0}, 2, v{V_M}')
    a(f'v_and_b32 v{T1}, 3, v0')
    a(f'v_lshl_add_u32 v{T2}, v{V_G}, 2, v{T0}')
    a(f'v_lshlrev_b32 v{T2}, 8, v{T2}')
    a(f'v_and_b32 v{T3}, 1, v{T1}')
    a(f'v_lshl_add_u32 v{T2}, v{T3}, 3, v{T2}')
    a(f'v_and_b32 v{T3}, 1, v{V_G}')
    a(f'v_lshlrev_b32 v{T3}, 3, v{T3}')
    a(f'v_lshl_add_u32 v{T3}, v{T0}, 1, v{T3}')
    a(f'v_lshrrev_b32 v{T1}, 1, v{T1}')
    a(f'v_xor_b32 v{T1}, v{T1}, v{T3}')
    a(f'v_lshl_add_u32 v{T2}, v{T1}, 4, v{T2}')
    a(f's_add_u32 s{S_T0}, s{S_T0}, 24576')
    a(f'v_add_u32 v{vV}, s{S_T0}, v{T2}')
    for t in range(1,8): a(f'v_xor_b32 v{vV+t}, {32*t}, v{vV}')
    a('s_waitcnt lgkmcnt(4)')
    for U in range(4):
        a(f'v_mfma_f32_16x16x32_bf16 v[{S}:{S+3}], v[{KF+U*4}:{KF+U*4+3}], v[{QF+4*U}:{QF+4*U+3}], '+('0' if U==0 else f'v[{S}:{S+3}]'))
    for U in range(4): a(f'ds_read_b128 v[{KF+(8+U)*4}:{KF+(8+U)*4+3}], v{vK+U} offset:8192')
    a('s_waitcnt lgkmcnt(4)')
    for U in range(4):
        a(f'v_mfma_f32_16x16x32_bf16 v[{S+4}:{S+7}], v[{KF+(4+U)*4}:{KF+(4+U)*4+3}], v[{QF+4*U}:{QF+4*U+3}], '+('0' if U==0 else f'v[{S+4}:{S+7}]'))
    a('s_waitcnt lgkmcnt(0)')
    for U in range(4):
        a(f'v_mfma_f32_16x16x32_bf16 v[{S+8}:{S+11}], v[{KF+(8+U)*4}:{KF+(8+U)*4+3}], v[{QF+4*U}:{QF+4*U+3}], '+('0' if U==0 else f'v[{S+8}:{S+11}]'))
    def vreads(ts):
        for t in ts:
            a(f'ds_read_b64_tr_b16 v[{VF32+4*t}:{VF32+4*t+1}], v{vV+t}')
            a(f'ds_read_b64_tr_b16 v[{VF32+4*t+2}:{VF32+4*t+3}], v{vV+t} offset:4096')
            a(f'ds_read_b64_tr_b16 v[{VF16+2*t}:{VF16+2*t+1}], v{vV+t} offset:8192')
    vreads(range(0,4))
    for p in range(6): a(f'v_cvt_pk_bf16_f32 v{TP+p}, v{S+2*p}, v{S+2*p+1}')
    for p in range(6):
        a(f'v_lshlrev_b32 v{X+2*p}, 16, v{TP+p}')
        a(f'v_and_b32 v{X+2*p+1}, 0xffff0000, v{TP+p}')
    for i in range(12): a(f'v_mul_f32 v{X+i}, {SCALE}, v{X+i}')
    for p in range(6): a(f'v_cvt_pk_bf16_f32 v{TP+p}, v{X+2*p}, v{X+2*p+1}')
    for p in range(6):
        a(f'v_lshlrev_b32 v{X+2*p}, 16, v{TP+p}')
        a(f'v_and_b32 v{X+2*p+1}, 0xffff0000, v{TP+p}')
    a('s_waitcnt lgkmcnt(0)')
    vreads(range(4,8))
    M=62; M2=63
    a(f'v_max3_f32 v{M}, v{X}, v{X+1}, v{X+2}')
    for i in range(3,11,2): a(f'v_max3_f32 v{M}, v{M}, v{X+i}, v{X+i+1}')
    a(f'v_max_f32 v{M}, v{M}, v{X+11}')
    for sw in ('v_permlane32_swap_b32','v_permlane16_swap_b32'):
        a(f'v_mov_b32 v{M2}, v{M}')
        a(f'{sw} v{M}, v{M2}')
        a(f'v_max_f32 v{M}, v{M}, v{M2}')
    a(f'v_mul_f32 v{M}, s{S_L2E}, v{M}')
    for i in range(12): a(f'v_fma_f32 v{X+i}, v{X+i}, s{S_L2E}, -v{M}')
    for i in range(12): a(f'v_exp_f32 v{X+i}, v{X+i}')
    SM=64
    a(f'v_add_f32 v{SM}, v{X}, v{X+1}')
    for i in range(2,12): a(f'v_add_f32 v{SM}, v{SM}, v{X+i}')
    for sw in ('v_permlane32_swap_b32','v_permlane16_swap_b32'):
        a(f'v_mov_b32 v{M2}, v{SM}')
        a(f'{sw} v{SM}, v{M2}')
        a(f'v_add_f32 v{SM}, v{SM}, v{M2}')
    a(f'v_rcp_f32 v{SM}, v{SM}')
    for i in range(12): a(f'v_mul_f32 v{X+i}, v{X+i}, v{SM}')
    for p in range(6): a(f'v_cvt_pk_bf16_f32 v{PP+p}, v{X+2*p}, v{X+2*p+1}')
    a('s_waitcnt lgkmcnt(0)')
    for t in range(8):
        a(f'v_mfma_f32_16x16x32_bf16 v[{OA+4*t}:{OA+4*t+3}], v[{VF32+4*t}:{VF32+4*t+3}], v[{PP}:{PP+3}], 0')
    for t in range(8):
        a(f'v_mfma_f32_16x16x16_bf16 v[{OA+4*t}:{OA+4*t+3}], v[{VF16+2*t}:{VF16+2*t+1}], v[{PP+4}:{PP+5}], v[{OA+4*t}:{OA+4*t+3}]')
    a(f's_lshl_b32 s{S_T0}, s{S_BP}, 5')
    a(f's_add_u32 s{S_T0}, s{S_T0}, s{S_HEAD}')
    a(f's_mul_i32 s{S_T0}, s{S_T0}, 24576')
    a(f's_mul_i32 s{S_T1}, s{S_BB}, 6144')
    a(f's_lshl_b32 s{S_T2}, s{S_MT}, 11')
    a(f's_add_u32 s{S_T1}, s{S_T1}, s{S_T2}')
    a(f's_add_u32 s{S_T0}, s{S_T0}, s{S_T1}')
    a(f's_add_u32 s{S_T2}, s{S_T0}, 12288')
    a(f'v_lshlrev_b32 v{vQ}, 4, v0')
    a(f'v_add_u32 v{vK}, s{S_T1}, v{vQ}')
    a(f'v_add_u32 v{vK+1}, {STAGE}, v{vK}')
    for u in range(4):
        for h2 in range(2):
            t=2*u+h2
            a(f'v_cvt_pk_bf16_f32 v{OP+4*u+2*h2}, v{OA+4*t}, v{OA+4*t+1}')
            a(f'v_cvt_pk_bf16_f32 v{OP+4*u+2*h2+1}, v{OA+4*t+2}, v{OA+4*t+3}')
        off=f' offset:{(u&1)*1024}' if u&1 else ''
        a(f'buffer_store_dwordx4 v[{OP+4*u}:{OP+4*u+3}], v{vQ}, s[{R_WS}:{R_WS+3}], s{S_T0 if u<2 else S_T2} offen{off} sc1')
        a(f'ds_write_b128 v{vK+(u>>1)}, v[{OP+4*u}:{OP+4*u+3}]{off}')
    a(f's_lshl_b32 s{S_T0}, s{S_KS}, 3')
    a(f's_add_u32 s{S_T0}, s{S_T0}, s{S_BP}')
    a(f's_lshl_b32 s{S_T0}, s{S_T0}, 9')
    a(f's_lshl_b32 s{S_T1}, s{S_NT}, 6')
    a(f's_add_u32 s{S_T0}, s{S_T0}, s{S_T1}')
    a(f's_lshl_b32 s{S_T1}, s{S_W}, 3')
    a(f's_add_u32 s{S_T0}, s{S_T0}, s{S_T1}')
    a(f's_add_u32 s{S_KVM}, s{S_T0}, {WS_FO}')
    a(f'v_mov_b32 v{T5}, 0')
    stamp(a,5)
    a(f's_cmp_ge_u32 s{S_W}, 4')
    a('s_cbranch_scc1 L_ld45')
    a.c('==== consumer P2')
    a(f's_mul_i32 s{S_T0}, s{S_WM}, 6144')
    a(f'v_lshl_add_u32 v12, v0, 4, s{S_T0}')
    a('v_add_u32 v13, 1024, v12')
    a(f'v_add_u32 v14, {2*STAGE}, v12')
    a(f'v_add_u32 v15, {2*STAGE}, v13')
    baddr_calc(a,True)
    a('s_waitcnt lgkmcnt(0)')
    a('s_barrier')
    stamp(a,6)
    if OPT['stamps']: a('s_waitcnt lgkmcnt(0)')
    def sig():
        a('s_waitcnt vmcnt(0)')
        flag_store(a,S_KVM,T5)
        stamp(a,7)
    consumer_loop(a, prebar={1:sig})
    stamp(a,8)
    a.c('partials')
    a(f's_lshl_b32 s{S_T3}, s{S_NT}, 3')
    a(f's_add_u32 s{S_T3}, s{S_T3}, s{S_BP}')
    a('v_lshlrev_b32 v1, 4, v0')
    for t in range(1,4):
        a(f's_add_u32 s{S_T0}, s{S_KS}, {t}')
        a(f's_and_b32 s{S_T0}, s{S_T0}, 3')
        a(f's_lshl_b32 s{S_T1}, s{S_T3}, 2')
        a(f's_add_u32 s{S_T0}, s{S_T0}, s{S_T1}')
        a(f's_lshl_b32 s{S_T0}, s{S_T0}, 2')
        a(f's_add_u32 s{S_T0}, s{S_T0}, s{S_W}')
        a(f's_mul_i32 s{S_T0}, s{S_T0}, 9216')
        a(f's_add_u32 s{S_T0}, s{S_T0}, {WS_P+(t-1)*3072}')
        for mt in range(3):
            ac=ACC+(t*3+mt)*4
            off=f' offset:{mt*1024}' if mt else ''
            a(f'buffer_store_dwordx4 v[{ac}:{ac+3}], v1, s[{R_WS}:{R_WS+3}], s{S_T0} offen{off} sc1')
    a(f's_lshl_b32 s{S_T0}, s{S_T3}, 7')
    a(f's_lshl_b32 s{S_T1}, s{S_W}, 5')
    a(f's_add_u32 s{S_T0}, s{S_T0}, s{S_T1}')
    a(f's_add_u32 s{S_T2}, s{S_T0}, {WS_FP}')
    a(f's_lshl_b32 s{S_T1}, s{S_KS}, 3')
    a(f's_add_u32 s{S_KVM}, s{S_T2}, s{S_T1}')
    a('v_and_b32 v2, 3, v0')
    a('v_lshlrev_b32 v2, 3, v2')
    a(f's_lshl_b32 s{S_T1}, s{S_T3}, 2')
    a(f's_add_u32 s{S_T1}, s{S_T1}, s{S_KS}')
    a(f's_lshl_b32 s{S_T1}, s{S_T1}, 2')
    a(f's_add_u32 s{S_T1}, s{S_T1}, s{S_W}')
    a(f's_mul_i32 s{S_T1}, s{S_T1}, 9216')
    a(f's_add_u32 s{S_AO}, s{S_T1}, {WS_P}')
    a(f's_mul_i32 s{S_T0}, s{S_BP}, 96')
    a(f's_mul_i32 s{S_T1}, s{S_WM}, 48')
    a(f's_add_u32 s{S_T0}, s{S_T0}, s{S_T1}')
    a(f's_lshl_b32 s{S_T0}, s{S_T0}, 11')
    a(f's_lshl_b32 s{S_T1}, s{S_NT}, 8')
    a(f's_add_u32 s{S_T0}, s{S_T0}, s{S_T1}')
    a(f's_lshl_b32 s{S_T1}, s{S_WN}, 7')
    a(f's_add_u32 s{S_T0}, s{S_T0}, s{S_T1}')
    a(f's_lshl_b32 s{S_T1}, s{S_KS}, 5')
    a(f's_add_u32 s{S_BO}, s{S_T0}, s{S_T1}')
    a(f'v_lshlrev_b32 v3, 11, v{V_M}')
    a(f'v_lshl_add_u32 v3, v{V_G}, 3, v3')
    a('s_waitcnt vmcnt(0)')
    flag_store(a,S_KVM,T5)
    stamp(a,9)
    poll(a,'p',2,S_T2,4)
    stamp(a,10)
    R=80
    for t in range(3):
        a(f's_add_u32 s{S_T0}, s{S_AO}, {t*3072}')
        for mt in range(3):
            r=R+(t*3+mt)*4
            off=f' offset:{mt*1024}' if mt else ''
            a(f'buffer_load_dwordx4 v[{r}:{r+3}], v1, s[{R_WS}:{R_WS+3}], s{S_T0} offen{off} sc1')
    for mt in range(3):
        ac=ACC+mt*4
        if mt==0: a('s_waitcnt vmcnt(0)')
        for e in range(4):
            a(f'v_add_f32 v{ac+e}, v{ac+e}, v{R+(0*3+mt)*4+e}')
            a(f'v_add_f32 v{ac+e}, v{ac+e}, v{R+(1*3+mt)*4+e}')
            a(f'v_add_f32 v{ac+e}, v{ac+e}, v{R+(2*3+mt)*4+e}')
        a(f'v_cvt_pk_bf16_f32 v{ac}, v{ac}, v{ac+1}')
        a(f'v_cvt_pk_bf16_f32 v{ac+1}, v{ac+2}, v{ac+3}')
        a(f'buffer_store_dwordx2 v[{ac}:{ac+1}], v3, s[{R_OUT}:{R_OUT+3}], s{S_BO} offen')
        if mt<2: a(f's_add_u32 s{S_BO}, s{S_BO}, {16*2048}')
    if OPT['stamps']==3:
        a('s_waitcnt vmcnt(0)')
        stamp(a,11)
        a('s_waitcnt lgkmcnt(0)')
        a(f's_xor_b32 s{S_T0}, s2, {OPT["dbgwg"]}')
        a(f's_or_b32 s{S_T0}, s{S_T0}, s{S_W}')
        a(f's_cmp_eq_u32 s{S_T0}, 0')
        a('s_cbranch_scc0 L_end')
        a('v_mov_b32 v2, 0')
        for j in range(NST):
            a(f's_sub_u32 s{S_T0}, s{S_ST+2*j}, s{S_N}')
            a(f'v_mov_b32 v4, s{S_T0}')
            a(f'buffer_store_dword v4, v2, s[{R_DBG}:{R_DBG+3}], 0 offen offset:{8+4*j}')
            a('s_nop 1')
    elif OPT['stamps']:
        a('s_waitcnt vmcnt(0)')
        stamp(a,11)
        a(f's_cmp_eq_u32 s{S_W}, 0')
        a('s_cbranch_scc0 L_end')
        stamp_flush(a,'c',0)
    a('s_endpgm')
    a.label('L_ld45')
    a('s_waitcnt vmcnt(0) lgkmcnt(0)')
    flag_store(a,S_KVM,T5)
    a('s_branch L_ldbx')
    a.label('L_pref')
    a(f's_lshl_b32 s{S_T0}, s{S_NT}, 7')
    a(f's_mul_i32 s{S_T1}, s{S_BP}, 96')
    a(f's_add_u32 s{S_T0}, s{S_T0}, s{S_T1}')
    a(f's_sub_u32 s{S_T1}, s{S_W}, 6')
    a(f's_mul_i32 s{S_T1}, s{S_T1}, 48')
    a(f's_add_u32 s{S_T0}, s{S_T0}, s{S_T1}')
    a(f's_add_u32 s{S_T0}, s{S_T0}, 256')
    a(f'v_lshlrev_b32 v{T0}, 11, v{V_G}')
    a(f'v_lshl_add_u32 v{T0}, v{V_M}, 4, v{T0}')
    for k in range(12):
        a(f's_and_b32 s{S_T1}, s{S_T0}, 1023')
        a(f's_lshl_b32 s{S_T1}, s{S_T1}, 11')
        a(f'buffer_load_dwordx4 v[{V_JUNK}:{V_JUNK+3}], v{T0}, s[{R_WO}:{R_WO+3}], s{S_T1} offen')
        if k<11: a(f's_add_u32 s{S_T0}, s{S_T0}, 4')
    a('s_waitcnt vmcnt(12)')
    a.label('L_ldbx')
    a.c('==== loader P2')
    vm=VM(a)
    a(f's_sub_u32 s{S_LI}, s{S_W}, 4')
    a(f'v_lshlrev_b32 v1, 4, v0')
    a(f's_mul_i32 s{S_T0}, s{S_LI}, 3072')
    a(f'v_add_u32 v1, s{S_T0}, v1')
    a(f's_lshl_b32 s{S_T0}, s{S_BP}, 5')
    a(f's_lshl_b32 s{S_T1}, s{S_KS}, 3')
    a(f's_add_u32 s{S_T0}, s{S_T0}, s{S_T1}')
    a(f's_mul_i32 s{S_T3}, s{S_T0}, 24576')
    a(f'v_lshrrev_b32 v2, 3, v0')
    a(f'v_and_b32 v3, 7, v0')
    a(f'v_min_u32 v3, 5, v3')
    a(f'v_lshlrev_b32 v3, 3, v3')
    a(f'v_lshl_add_u32 v2, v2, 6, v3')
    a(f's_lshl_b32 s{S_T0}, s{S_KS}, 3')
    a(f's_add_u32 s{S_T0}, s{S_T0}, s{S_BP}')
    a(f's_lshl_b32 s{S_T0}, s{S_T0}, 9')
    a(f's_add_u32 s{S_KVM}, s{S_T0}, {WS_FO}')
    fstamp(a,'preBX')
    a('s_barrier')
    stamp(a,6)
    fstamp(a,'BX')
    a('s_barrier')
    fstamp(a,'2B0')
    poll(a,'o',2,S_KVM,12)
    stamp(a,7)
    fstamp(a,'poll')
    def offs(st):
        a(f's_lshl_b32 s{S_T0}, s{S_NT}, 1')
        a(f's_add_u32 s{S_T0}, s{S_T0}, {st}')
        a(f's_and_b32 s{S_T0}, s{S_T0}, 15')
        a(f's_lshl_b32 s{S_BO}, s{S_T0}, 17')
        a(f's_mul_i32 s{S_AO}, s{S_T0}, 12288')
        a(f's_add_u32 s{S_AO}, s{S_AO}, s{S_T3}')
    VA2=[1,1,1]
    offs(2); issueA(R_WS,VA2,2,2,' sc1')
    offs(3); issueA(R_WS,VA2,3,3,' sc1')
    offs(4); issueA(R_WS,VA2,4,4,' sc1'); issueB(R_WO,V_B2,4,4)
    for st in range(1,16):
        if st<15: vm.wait(st+1)
        fstamp(a,f'2w{st+1}')
        a('s_barrier')
        fstamp(a,f'2B{st}')
        if st==1: stamp(a,8)
        if st+4<16:
            offs(st+4); issueA(R_WS,VA2,st+4,st+4,' sc1'); issueB(R_WO,V_B2,st+4,st+4)
    fstamp_flush(a)
    if OPT['stamps'] in (1,2):
        stamp(a,9)
        a(f's_memtime s[{S_ST+22}:{S_ST+23}]')
        a(f's_cmp_eq_u32 s{S_W}, 4')
        a('s_cbranch_scc0 L_end')
        stamp_flush(a,'l',1)
    a.label('L_end')
    a('s_endpgm')
    return a

def kd(name, vg):
    return f""".p2align 6
.amdhsa_kernel {name}
  .amdhsa_next_free_vgpr {vg}
  .amdhsa_next_free_sgpr 100
  .amdhsa_accum_offset {vg}
  .amdhsa_group_segment_fixed_size 0
  .amdhsa_kernarg_size 64
  .amdhsa_user_sgpr_count 2
  .amdhsa_user_sgpr_kernarg_segment_ptr 1
  .amdhsa_system_sgpr_workgroup_id_x 1
.end_amdhsa_kernel
"""

def build():
    ref=open('cdna_kernels/'+NAME+'.s.ref').read().split('\n')
    hdr=[l for l in ref if l.startswith(';') and '@launch' not in l and 'Override' not in l and 'grid=ceil' not in l]
    out='\n'.join(hdr[:9])+'\n'
    if OPT['aslist']:
        global K
        K='mha_fused_kernel'
        if OPT['aslist']==3: out+='; @launch kernel=mha_empty_kernel grid=(256,1,1) block=(256,1,1) lds=0\n'
        out+='; @launch kernel=mha_fused_kernel grid=(256,1,1) block=(512,1,1) lds=163840\n'
        if OPT['aslist']==2: out+='; @launch kernel=mha_fused_kernel grid=(256,1,1) block=(512,1,1) lds=163840\n'
    else:
        out+='; @launch grid=(256,1,1) block=(512,1,1) lds=163840\n'
    out+='.amdgcn_target "amdgcn-amd-amdhsa--gfx950"\n.text\n'
    out+=build_kernel().text()
    if OPT['aslist']==3:
        out+='.globl mha_empty_kernel\n.p2align 8\n.type mha_empty_kernel,@function\nmha_empty_kernel:\n  s_endpgm\n'
    out+='.section .rodata,"a"\n'
    out+=kd(K,256)
    if OPT['aslist']==3: out+=kd('mha_empty_kernel',8)
    return out

if __name__=='__main__':
    dst='cdna_kernels/'+NAME+'.s'
    for x in sys.argv[1:]:
        if '=' in x:
            k,v=x.split('='); OPT[k]=int(v)
        else: dst=x
    open(dst,'w').write(build())
    if '_names' in OPT: open(dst+'.names','w').write('\n'.join(OPT['_names'])+'\n')
    print('wrote',dst)
```

```python
import re

TRANS = ('v_exp_f32','v_log_f32','v_rcp_f32','v_rsq_f32','v_sqrt_f32','v_sin_f32','v_cos_f32','v_rcp_iflag_f32')

def regs_of(tok):
    tok = tok.strip()
    neg = tok.startswith('-')
    if neg: tok = tok[1:]
    m = re.fullmatch(r'(?:abs|sext)\((.*)\)', tok)
    if m: tok = m.group(1)
    if tok.startswith('|') and tok.endswith('|'): tok = tok[1:-1]
    m = re.fullmatch(r'([vas])\[(\d+):(\d+)\]', tok)
    if m:
        return {(m.group(1), i) for i in range(int(m.group(2)), int(m.group(3))+1)}
    m = re.fullmatch(r'([vas])(\d+)', tok)
    if m:
        return {(m.group(1), int(m.group(2)))}
    if tok == 'vcc': return {('s',106),('s',107)}
    if tok == 'vcc_lo': return {('s',106)}
    if tok == 'vcc_hi': return {('s',107)}
    if tok == 'm0': return {('s',124)}
    if tok == 'exec': return {('s',126),('s',127)}
    return set()

class Ins:
    __slots__=('text','op','dst','src','kind','passes','states','srcC','isdma','wide_store','ops')
    def __init__(self, text):
        self.text = text
        t = text.split(';')[0].strip()
        self.op = t.split()[0] if t else ''
        rest = t[len(self.op):].strip()
        ops=[]; depth=0; cur=''
        for ch in rest:
            if ch=='[': depth+=1
            if ch==']': depth-=1
            if ch==',' and depth==0:
                ops.append(cur.strip()); cur=''
            else: cur+=ch
        if cur.strip(): ops.append(cur.strip())
        mods=[]
        if ops:
            parts=ops[-1].split()
            if len(parts)>1:
                ops[-1]=parts[0]; mods=parts[1:]
        self.ops=ops
        op=self.op
        self.dst=set(); self.src=set(); self.srcC=set(); self.passes=0; self.states=1
        self.isdma=False; self.wide_store=False
        if op=='s_nop':
            self.kind='nop'; self.states=int(ops[0],0)+1; return
        if op.startswith('v_mfma'):
            self.kind='mfma'
            self.passes = 8 if '32x32' in op else 4
            self.dst=regs_of(ops[0]); self.srcC=regs_of(ops[3])
            self.src=regs_of(ops[1])|regs_of(ops[2])|self.srcC
            return
        if op.startswith('v_'):
            self.kind='valu'
            if op.startswith('v_cmp'):
                self.dst=regs_of(ops[0]);
                for o in ops[1:]: self.src|=regs_of(o)
                if op.startswith('v_cmpx'): self.dst|=regs_of('exec')
            elif op.startswith('v_permlane') and 'swap' in op:
                self.dst=regs_of(ops[0])|regs_of(ops[1]); self.src=set(self.dst)
            elif op in ('v_readfirstlane_b32','v_readlane_b32'):
                self.dst=regs_of(ops[0])
                for o in ops[1:]: self.src|=regs_of(o)
            elif op.startswith(('v_add_co','v_addc_co','v_sub_co','v_subb_co')):
                self.dst=regs_of(ops[0])|regs_of(ops[1])
                for o in ops[2:]: self.src|=regs_of(o)
            else:
                self.dst=regs_of(ops[0])
                for o in ops[1:]: self.src|=regs_of(o)
                if op.startswith(('v_fmac','v_pk_fmac','v_fmamk','v_dot2c')): self.src|=self.dst
                if op.startswith('v_cndmask') and len(ops)==3: self.src|=regs_of('vcc')
            return
        if op.startswith('ds_'):
            self.kind='ds'
            if op.startswith(('ds_read','ds_bpermute','ds_permute','ds_swizzle')):
                self.dst=regs_of(ops[0])
                for o in ops[1:]: self.src|=regs_of(o)
            else:
                for o in ops: self.src|=regs_of(o)
            return
        if op.startswith(('buffer_','global_','flat_')):
            self.kind='vmem'
            allm=' '.join(mods)
            if 'load' in op and (' lds' in ' '+allm or op.startswith('global_load_lds')):
                self.isdma=True
                for o in ops: self.src|=regs_of(o)
                self.src|=regs_of('m0')
            elif 'load' in op:
                self.dst=regs_of(ops[0])
                for o in ops[1:]: self.src|=regs_of(o)
            elif 'atomic' in op:
                for o in ops: self.src|=regs_of(o)
                if 'sc0' in mods: self.dst=regs_of(ops[0])
            elif op in ('buffer_wbl2','buffer_inv'):
                pass
            else:
                for o in ops: self.src|=regs_of(o)
                if 'x3' in op or 'x4' in op:
                    self.wide_store=True
            return
        if op.startswith('s_'):
            self.kind='salu'
            if op.startswith(('s_cmp','s_waitcnt','s_barrier','s_branch','s_cbranch','s_endpgm','s_setprio','s_sleep','s_bitcmp')):
                for o in ops: self.src|=regs_of(o)
            else:
                self.dst=regs_of(ops[0]) if ops else set()
                for o in ops[1:]: self.src|=regs_of(o)
                if 'saveexec' in op: self.dst|=regs_of('exec'); self.src|=regs_of('exec')
            return
        self.kind='other'

    def store_data(self):
        if self.op.startswith('buffer_store'): return regs_of(self.ops[0])
        if self.op.startswith('global_store'): return regs_of(self.ops[1])
        return set()

def only(rs, k): return {r for r in rs if r[0] in k}

def need(prev, cur):
    n=0
    pv=only(prev.dst,'va'); ps=only(prev.dst,'s')
    if prev.kind=='valu':
        if cur.kind=='mfma' and (pv & cur.src): n=max(n,2)
        if cur.kind=='mfma' and (prev.dst & regs_of('exec')): n=max(n,4)
        if cur.kind=='vmem' and (ps & cur.src): n=max(n,5)
        if cur.kind=='valu':
            if ps & cur.src: n=max(n,2)
            if cur.op in ('v_readlane_b32','v_writelane_b32') and (ps & cur.src): n=max(n,4)
            if cur.op in ('v_readfirstlane_b32','v_readlane_b32') and (pv & cur.src): n=max(n,1)
            if cur.op.startswith('v_permlane') and (pv & cur.src): n=max(n,2)
            if ('dpp' in cur.text or 'row_' in cur.text or 'quad_perm' in cur.text) and (pv & cur.src): n=max(n,2)
            if prev.op.split('_e')[0] in TRANS and (pv & cur.src): n=max(n,1)
            if ('op_sel' in prev.text or 'sdwa' in prev.text) and (pv & (cur.src|cur.dst)): n=max(n,1)
            if (prev.dst & regs_of('exec')): n=max(n,4)
        if cur.kind=='salu' and (ps & cur.src): n=max(n,1)
    if prev.kind=='mfma':
        p=prev.passes
        d=prev.dst
        if cur.kind=='mfma':
            if d & (cur.src - cur.srcC) or (d & (regs_of(cur.ops[1])|regs_of(cur.ops[2]))):
                n=max(n, 8 if p==4 else 12)
            if d & cur.srcC:
                if not (d==cur.srcC and prev.op==cur.op): n=max(n, 6 if p==4 else 10)
            if d & cur.dst and not (d & cur.srcC):
                n=max(n, 8 if p==4 else 12)
        elif cur.kind in ('valu','vmem','ds'):
            if d & (cur.src|cur.dst): n=max(n, 8 if p==4 else 12)
        if cur.kind=='valu' and (prev.srcC & cur.dst): n=max(n, 3 if p==4 else 7)
    if prev.kind=='valu' and prev.op.startswith('v_dot'):
        if pv & (cur.src|cur.dst):
            same = (cur.kind=='valu' and cur.op==prev.op and not (pv & (regs_of(cur.ops[1])|regs_of(cur.ops[2]))))
            if not same: n=max(n,3)
    if prev.kind=='salu':
        if cur.kind=='vmem' and cur.isdma and (prev.dst & regs_of('m0')): n=max(n,1)
    if prev.kind=='vmem' and prev.wide_store:
        sd=prev.store_data()
        if cur.kind=='valu' and (sd & cur.dst): n=max(n,2)
        elif sd & cur.dst: n=max(n,1)
    return n

class Asm:
    def __init__(self):
        self.out=[]
        self.nnop=0
    def raw(self, s): self.out.append(s)
    def label(self, l): self.out.append(l+':')
    def c(self, s): self.out.append('  ; '+s)
    def __call__(self, text):
        for line in text.split('\n'):
            line=line.strip()
            if not line: continue
            if line.startswith(';'): self.out.append('  '+line); continue
            ins=Ins(line)
            dist=0; req=0
            for prev in reversed(self.out):
                if not isinstance(prev,Ins): continue
                r=need(prev,ins)
                if r>dist: req=max(req, r-dist)
                dist+=prev.states
                if dist>=20: break
            while req>0:
                k=min(req,16)
                self.out.append(Ins('s_nop %d'%(k-1))); self.nnop+=1
                req-=k
            self.out.append(ins)
    def fence(self, n=12):
        self('s_nop %d'%(n-1))
    def text(self):
        return '\n'.join(('  '+o.text) if isinstance(o,Ins) else o for o in self.out)+'\n'
```

```python
import sys
from asmlib import Asm

NAME='standalone__mha_block_cached__near_ridge'
K=NAME+'_kernel'
STAGE=28672
KVBASE=4*STAGE
WS_O=0
WS_P=8<<20
WS_FO=20<<20
WS_FP=(20<<20)+65536
SZ_WS=21<<20
SZ_X=768*2048; SZ_W=1024*8192; SZ_KV=16*32*12288; SZ_OUT=768*2048
SCALE='0x3db504f3'; LOG2E='0x3fb8aa3b'
SPIN=1<<15

OPT=dict(wsoff=0, stamps=0, kvnt=1, rot=1, kvst=0, prio=0, npro=3, dbgwg=0, aslist=0, kvmode=0, front=0, nomfma=0, noa=0, lprio=0, fall=0, nob=0, nords=0)

V_A=[1,2,3]; V_B=[4,5,6,7]; V_B2=[8,9,10,11]
V_KV=[8,9,10,11]
V_AADDR=[[12,13],[14,15]]; V_BADDR=[[16,17,18,19],[20,21,22,23]]
V_G=24; V_M=25
T0=26; T1=27; T2=28; T3=29; T4=30; T5=31
ACC=32; FA=80; FB=104
V_N=140
V_JUNK=252
S_XP=4; S_KP=6; S_VP=8; S_WQP=10; S_WOP=12; S_OUTP=14; S_DBGP=16; S_WSP=18
R_X=20; R_WQ=24; R_KV=28; R_WS=32; R_WO=84; R_OUT=88; R_DBG=92
S_W=36; S_HEAD=37; S_BP=38; S_KS=39; S_NT=40
S_AO=41; S_BO=42; S_M0A=43; S_M0B=44
S_T0=45; S_T1=46; S_T2=47; S_KVM=48; S_T3=49; S_WM=50; S_WN=51
S_BB=52; S_MT=53; S_CUR=54; S_CNT=55; S_L2E=56; S_LI=57
S_N=58
S_ST=60
NST=12

def srd(a, d, base, size, add=None):
    if add is None:
        a(f's_mov_b32 s{d}, s{base}')
        a(f's_mov_b32 s{d+1}, s{base+1}')
        a(f's_mov_b32 s{d+2}, {size}')
    else:
        a(f's_add_u32 s{d}, s{base}, s{add}')
        a(f's_addc_u32 s{d+1}, s{base+1}, 0')
        a(f's_sub_u32 s{d+2}, {size}, s{add}')
    a(f's_mov_b32 s{d+3}, 0x20000')

def stamp(a,j):
    if OPT['stamps']: a(f's_memrealtime s[{S_ST+2*j}:{S_ST+2*j+1}]')
def stamp_flush(a,tag,li):
    if not OPT['stamps']: return
    a('s_waitcnt lgkmcnt(0)')
    a(f's_mov_b32 s{S_T0}, {(64<<20)+li*256*NST*8}')
    a(f's_mul_i32 s{S_T1}, s2, {NST*8}')
    a(f's_add_u32 s{S_T0}, s{S_T0}, s{S_T1}')
    srd(a,R_X,S_WSP,256<<20,S_T0)
    a('v_mov_b32 v2, 0')
    for j in range(NST):
        a(f'v_mov_b32 v4, s{S_ST+2*j}')
        a(f'v_mov_b32 v5, s{S_ST+2*j+1}')
        a(f'buffer_store_dwordx2 v[4:5], v2, s[{R_X}:{R_X+3}], 0 offen offset:{8*j}')
        a('s_nop 1')

FINE=[]
V_FS=200
def fstamp(a,name):
    if OPT['stamps']!=2: return
    if not OPT['fall'] and name not in ('start','B-1','B3','B7','B8','B11','B12','B15','preBX','BX','poll','2B1','2B2','2B12','2B15'): return
    i=len(FINE)
    if i>0:
        a('s_waitcnt lgkmcnt(0)')
        a(f'v_writelane_b32 v{V_FS+((i-1)>>6)}, s96, {(i-1)&63}')
    a('s_memrealtime s[96:97]')
    FINE.append(name)
def fstamp_flush(a):
    if OPT['stamps']!=2: return
    i=len(FINE)
    a('s_waitcnt lgkmcnt(0)')
    a(f'v_writelane_b32 v{V_FS+((i-1)>>6)}, s96, {(i-1)&63}')
    a(f's_cmp_eq_u32 s{S_W}, 6')
    a('s_cbranch_scc0 L_nofs')
    a(f's_mov_b32 s{S_T0}, {(65<<20)}')
    a(f's_lshl_b32 s{S_T1}, s2, 9')
    a(f's_add_u32 s{S_T0}, s{S_T0}, s{S_T1}')
    srd(a,R_X,S_WSP,256<<20,S_T0)
    a('v_lshlrev_b32 v2, 2, v0')
    a(f'buffer_store_dword v{V_FS}, v2, s[{R_X}:{R_X+3}], 0 offen')
    a(f'buffer_store_dword v{V_FS+1}, v2, s[{R_X}:{R_X+3}], 0 offen offset:256')
    a.label('L_nofs')
    OPT['_names']=list(FINE)

class VM:
    def __init__(s,a): s.a=a; s.q=[]
    def issue(s,text,tag):
        s.a(text); s.q.append(tag)
    def note(s,tag): s.q.append(tag)
    def wait(s,tag):
        if tag not in s.q: return
        idx=max(i for i,t in enumerate(s.q) if t==tag)
        n=len(s.q)-1-idx
        s.a(f's_waitcnt vmcnt({n})')
        del s.q[:idx+1]
    def waitall(s):
        s.a('s_waitcnt vmcnt(0)'); s.q=[]

def frag_reads(st,ks):
    if OPT['nords']: return []
    slot=st%4; se=slot>>1; so=(slot&1)*STAGE
    L=[]
    for mt in range(3):
        r=FA+(ks*3+mt)*4
        L.append(f'ds_read_b128 v[{r}:{r+3}], v{V_AADDR[se][ks]} offset:{so+mt*2048}')
    for t in range(4):
        r=FB+(ks*4+t)*4
        for hh in range(2):
            L.append(f'ds_read_b64_tr_b16 v[{r+2*hh}:{r+2*hh+1}], v{V_BADDR[se][t]} offset:{so+12288+ks*8192+hh*1024}')
    return L
def mfmas(ks, first):
    L=[]
    for t in range(4):
        for mt in range(3):
            ac=ACC+(t*3+mt)*4
            fa=FA+(ks*3+mt)*4; fb=FB+(ks*4+t)*4
            c='0' if first else f'v[{ac}:{ac+3}]'
            L.append(f'v_mfma_f32_16x16x32_bf16 v[{ac}:{ac+3}], v[{fb}:{fb+3}], v[{fa}:{fa+3}], {c}')
    return L
def interleave(a, M, others):
    n=len(M); k=len(others); j=0
    if OPT['nomfma']: M=['s_nop 0']*n
    for i,m in enumerate(M):
        a(m)
        tgt=min(k,((i+1)*k+n-1)//n) if i<n-1 else k
        if OPT['front']: tgt=min(k,(i+1)*OPT['front']) if i<n-1 else k
        while j<tgt:
            a(others[j]); j+=1

def consumer_loop(a, extra2=None, prebar=None, lastreads=False):
    for x in frag_reads(0,0): a(x)
    for st in range(16):
        a.c(f'---- stage {st}')
        a('s_waitcnt lgkmcnt(0)')
        interleave(a, mfmas(0, st==0), frag_reads(st,1))
        if prebar and st in prebar: prebar[st]()
        a('s_waitcnt lgkmcnt(0)')
        a('s_barrier')
        oth=frag_reads(st+1,0) if st<15 else []
        if extra2 and st in extra2:
            ex=extra2[st]
            oth=oth+ex
        interleave(a, mfmas(1,False), oth)

def baddr_calc(a, rot):
    a(f'v_lshrrev_b32 v{T0}, 2, v{V_M}')
    a(f'v_and_b32 v{T1}, 3, v0')
    a(f'v_lshl_add_u32 v{T2}, v{V_G}, 3, v{T0}')
    a(f'v_lshlrev_b32 v{T2}, 8, v{T2}')
    a(f'v_and_b32 v{T3}, 1, v{T1}')
    a(f'v_lshl_add_u32 v{T2}, v{T3}, 3, v{T2}')
    a(f'v_and_b32 v{T3}, 1, v{V_G}')
    a(f'v_lshlrev_b32 v{T3}, 3, v{T3}')
    a(f'v_lshl_add_u32 v{T3}, v{T0}, 1, v{T3}')
    a(f'v_lshrrev_b32 v{T1}, 1, v{T1}')
    a(f's_lshl_b32 s{S_T0}, s{S_WN}, 3')
    a(f'v_or_b32 v{T1}, s{S_T0}, v{T1}')
    for t in range(4):
        if rot:
            a(f's_add_u32 s{S_T0}, s{S_KS}, {t}')
            a(f's_and_b32 s{S_T0}, s{S_T0}, 3')
            a(f's_lshl_b32 s{S_T0}, s{S_T0}, 1')
            a(f'v_or_b32 v{T0}, s{S_T0}, v{T1}')
        else:
            a(f'v_or_b32 v{T0}, {2*t}, v{T1}')
        a(f'v_xor_b32 v{T0}, v{T0}, v{T3}')
        a(f'v_lshl_add_u32 v{V_BADDR[0][t]}, v{T0}, 4, v{T2}')
        a(f'v_add_u32 v{V_BADDR[1][t]}, {2*STAGE}, v{V_BADDR[0][t]}')

def late_srds(a):
    if OPT['wsoff']:
        a(f's_add_u32 s{R_WS}, s{S_WSP}, {OPT["wsoff"]<<20}')
        a(f's_addc_u32 s{R_WS+1}, s{S_WSP+1}, 0')
        a(f's_mov_b32 s{R_WS+2}, {SZ_WS}')
        a(f's_mov_b32 s{R_WS+3}, 0x20000')
    else:
        srd(a,R_WS,S_WSP,SZ_WS,None)
    srd(a,R_DBG,S_DBGP,256,None)
    srd(a,R_OUT,S_OUTP,SZ_OUT,None)
    a(f's_lshl_b32 s{S_T0}, s{S_KS}, 21')
    a(f's_lshl_b32 s{S_T1}, s{S_NT}, 8')
    a(f's_add_u32 s{S_T0}, s{S_T0}, s{S_T1}')
    srd(a,R_WO,S_WOP,SZ_W,S_T0)

def nonce_get(a, tag, vm_wait):
    vm_wait()
    a(f's_mov_b32 s{S_CNT}, {SPIN}')
    a.label(f'Ln_{tag}')
    a(f'v_readfirstlane_b32 s{S_N}, v{V_N}')
    a(f'v_readfirstlane_b32 s{S_N+1}, v{V_N+1}')
    a(f's_cmp_lg_u32 s{S_N+1}, 0')
    a(f's_cbranch_scc1 Lnd_{tag}')
    a(f's_sub_u32 s{S_CNT}, s{S_CNT}, 1')
    a(f's_cmp_eq_u32 s{S_CNT}, 0')
    a(f's_cbranch_scc1 Lnd_{tag}')
    a('s_sleep 2')
    a(f'v_mov_b32 v{T0}, 0')
    a(f'buffer_load_dwordx2 v[{V_N}:{V_N+1}], v{T0}, s[{R_DBG}:{R_DBG+3}], 0 offen sc1')
    a('s_waitcnt vmcnt(0)')
    a(f's_branch Ln_{tag}')
    a.label(f'Lnd_{tag}')

def poll(a, tag, voff, soff, vd):
    a(f's_mov_b32 s{S_CNT}, {SPIN}')
    a.label(f'Lp_{tag}')
    a(f'buffer_load_dwordx2 v[{vd}:{vd+1}], v{voff}, s[{R_WS}:{R_WS+3}], s{soff} offen sc1')
    a('s_waitcnt vmcnt(0)')
    a(f'v_cmp_ne_u64 vcc, s[{S_N}:{S_N+1}], v[{vd}:{vd+1}]')
    a(f's_cbranch_vccz Lpd_{tag}')
    a(f's_sub_u32 s{S_CNT}, s{S_CNT}, 1')
    a(f's_cmp_eq_u32 s{S_CNT}, 0')
    a(f's_cbranch_scc0 Lp_{tag}')
    a.label(f'Lpd_{tag}')

def flag_store(a, soff_reg, voff):
    a(f'v_mov_b32 v{V_N}, s{S_N}')
    a(f'v_mov_b32 v{V_N+1}, s{S_N+1}')
    a(f'buffer_store_dwordx2 v[{V_N}:{V_N+1}], v{voff}, s[{R_WS}:{R_WS+3}], s{soff_reg} offen sc1')

def build_kernel():
    a=Asm()
    a.raw(f'.globl {K}\n.p2align 8\n.type {K},@function\n{K}:')
    a('s_cmp_ge_u32 s2, 256')
    a('s_cbranch_scc1 L_end')
    a('s_load_dwordx16 s[4:19], s[0:1], 0')
    for j in range(NST): stamp(a,j)
    a('v_lshrrev_b32 v1, 6, v0')
    a('v_and_b32 v0, 63, v0')
    a(f'v_readfirstlane_b32 s{S_W}, v1')
    a(f'v_lshrrev_b32 v{V_G}, 4, v0')
    a(f'v_and_b32 v{V_M}, 15, v0')
    a(f's_and_b32 s{S_T0}, s2, 7')
    a(f's_lshr_b32 s{S_BP}, s2, 3')
    a(f's_and_b32 s{S_T1}, s{S_BP}, 3')
    a(f's_lshl_b32 s{S_HEAD}, s{S_T0}, 2')
    a(f's_add_u32 s{S_HEAD}, s{S_HEAD}, s{S_T1}')
    a(f's_lshr_b32 s{S_BP}, s{S_BP}, 2')
    a(f's_lshr_b32 s{S_KS}, s{S_HEAD}, 3')
    a(f's_and_b32 s{S_NT}, s{S_HEAD}, 7')
    a(f's_cmp_ge_u32 s{S_W}, 4')
    a('s_cbranch_scc0 L_cons1')
    a.c('==== loader P1')
    if OPT['stamps'] in (1,2): a(f's_memtime s[{S_ST+20}:{S_ST+21}]')
    if OPT['lprio']: a(f's_setprio {OPT["lprio"]}')
    vm=VM(a)
    a(f's_sub_u32 s{S_LI}, s{S_W}, 4')
    if OPT['rot']==2:
        a(f's_lshl_b32 s{S_CUR}, s{S_BP}, 1')
    elif OPT['rot']==3:
        a(f's_and_b32 s{S_CUR}, s{S_BP}, 3')
        a(f's_lshl_b32 s{S_CUR}, s{S_CUR}, 2')
    elif OPT['rot']==4:
        a(f's_and_b32 s{S_CUR}, s{S_BP}, 1')
        a(f's_lshl_b32 s{S_CUR}, s{S_CUR}, 3')
    elif OPT['rot']:
        a(f's_lshl_b32 s{S_CUR}, s{S_T1}, 1')
        a(f's_add_u32 s{S_CUR}, s{S_CUR}, s{S_BP}')
        a(f's_lshl_b32 s{S_CUR}, s{S_CUR}, 1')
        a(f's_and_b32 s{S_CUR}, s{S_CUR}, 15')
    else:
        a(f's_mov_b32 s{S_CUR}, 0')
    a(f'v_lshrrev_b32 v{T4}, 3, v0')
    a(f'v_and_b32 v{T5}, 7, v0')
    a(f's_mul_i32 s{S_T3}, s{S_LI}, 3')
    for ii in range(3):
        a(f's_add_u32 s{S_T0}, s{S_T3}, {ii}')
        a(f's_and_b32 s{S_T1}, s{S_T0}, 1')
        a(f's_lshl_b32 s{S_T1}, s{S_T1}, 2')
        a(f'v_or_b32 v{T0}, s{S_T1}, v{V_G}')
        a(f'v_xor_b32 v{T0}, v{T0}, v{T5}')
        a(f'v_lshlrev_b32 v{T0}, 4, v{T0}')
        a(f's_lshl_b32 s{S_T0}, s{S_T0}, 14')
        if ii: a(f's_sub_u32 s{S_T0}, s{S_T0}, {ii*1024}')
        a(f'v_lshlrev_b32 v{T1}, 11, v{T4}')
        a(f'v_add3_u32 v{V_A[ii]}, v{T0}, v{T1}, s{S_T0}')
    for hh in range(2):
        a(f'v_or_b32 v{T2+hh}, {hh<<2}, v{V_G}')
        a(f'v_lshlrev_b32 v{T2+hh}, 1, v{T2+hh}')
        a(f'v_xor_b32 v{T2+hh}, v{T2+hh}, v{V_M}')
        a(f'v_lshlrev_b32 v{T2+hh}, 4, v{T2+hh}')
    a(f'v_lshlrev_b32 v{T1}, 13, v{V_G}')
    for ii in range(4):
        a(f's_lshl_b32 s{S_T0}, s{S_LI}, 17')
        if ii: a(f's_add_u32 s{S_T0}, s{S_T0}, {ii*4*8192-ii*1024}')
        a(f'v_add3_u32 v{V_B[ii]}, v{T2+(ii>>1)}, v{T1}, s{S_T0}')
    a(f's_mul_i32 s{S_M0A}, s{S_LI}, 3072')
    a(f's_lshl_b32 s{S_M0B}, s{S_LI}, 12')
    a(f's_add_u32 s{S_M0B}, s{S_M0B}, 12288')
    a(f's_lshl_b32 s{S_AO}, s{S_CUR}, 7')
    a(f's_lshl_b32 s{S_BO}, s{S_CUR}, 19')
    a('s_waitcnt lgkmcnt(0)')
    a(f's_mul_i32 s{S_T0}, s{S_BP}, 196608')
    srd(a,R_X,S_XP,SZ_X,S_T0)
    a(f's_lshl_b32 s{S_T0}, s{S_HEAD}, 8')
    srd(a,R_WQ,S_WQP,SZ_W,S_T0)
    def issueA(rs,va,st,tag,aux=''):
        slot=st%4
        if OPT['noa'] and st>=4: return
        a(f's_add_u32 m0, s{S_M0A}, {slot*STAGE}')
        for ii in range(3):
            off=f' offset:{ii*1024}' if ii else ''
            vm.issue(f'buffer_load_dwordx4 v{va[ii]}, s[{rs}:{rs+3}], s{S_AO} offen{off}{aux} lds',tag)
    def issueB(rs,vb,st,tag,aux=''):
        slot=st%4
        if OPT['nob'] and isinstance(tag,int) and st>=4:
            vm.note(tag); vm.q.pop();
            return
        a(f's_add_u32 m0, s{S_M0B}, {slot*STAGE}')
        for ii in range(4):
            off=f' offset:{ii*1024}' if ii else ''
            vm.issue(f'buffer_load_dwordx4 v{vb[ii]}, s[{rs}:{rs+3}], s{S_BO} offen{off}{aux} lds',tag)
    def adv1():
        a(f's_add_u32 s{S_AO}, s{S_AO}, 128')
        a(f's_and_b32 s{S_AO}, s{S_AO}, 2047')
        a(f's_lshl_b32 s{S_BO}, s{S_AO}, 12')
    fstamp(a,'start')
    NPRO=OPT['npro']
    for st in range(NPRO):
        issueA(R_X,V_A,st,st); issueB(R_WQ,V_B,st,st); adv1()
        fstamp(a,f'pro{st}')
    stamp(a,1)
    late_srds(a)
    a(f'v_lshlrev_b32 v{T1}, 11, v{V_G}')
    a(f's_lshr_b32 s{S_T1}, s{S_LI}, 1')
    a(f's_lshl_b32 s{S_T1}, s{S_T1}, 5')
    a(f's_and_b32 s{S_T2}, s{S_LI}, 1')
    a(f's_lshl_b32 s{S_T2}, s{S_T2}, 3')
    a(f's_add_u32 s{S_T1}, s{S_T1}, s{S_T2}')
    a(f's_lshl_b32 s{S_T1}, s{S_T1}, 11')
    for ii in range(4):
        c=(16*(ii&1)+4*(ii>>1))*2048-ii*1024
        a(f's_add_u32 s{S_T0}, s{S_T1}, {c}' if c>=0 else f's_sub_u32 s{S_T0}, s{S_T1}, {-c}')
        a(f'v_add3_u32 v{V_B2[ii]}, v{T2+(ii>>1)}, v{T1}, s{S_T0}')
    vm.wait(0)
    fstamp(a,'w0')
    a('s_barrier')
    stamp(a,2)
    fstamp(a,'B-1')
    for st in range(NPRO,4):
        issueA(R_X,V_A,st,st); issueB(R_WQ,V_B,st,st); adv1()
    def wo_off(st):
        a(f's_lshl_b32 s{S_T0}, s{S_NT}, 1')
        a(f's_add_u32 s{S_T0}, s{S_T0}, {st}')
        a(f's_and_b32 s{S_T0}, s{S_T0}, 15')
        a(f's_lshl_b32 s{S_BO}, s{S_T0}, 17')
        return S_T0
    for st in range(16):
        if st<15: vm.wait(st+1)
        fstamp(a,f'w{st+1}')
        a('s_barrier')
        fstamp(a,f'B{st}')
        if st<12:
            issueA(R_X,V_A,st+4,st+4); issueB(R_WQ,V_B,st+4,st+4); adv1()
        else:
            if st==12:
                a(f'v_mov_b32 v{T0}, 0')
                vm.issue(f'buffer_load_dwordx2 v[{V_N}:{V_N+1}], v{T0}, s[{R_DBG}:{R_DBG+3}], 0 offen sc1','n')
            wo_off(st-12)
            issueB(R_WO,V_B2,st-12,('p',st-12))
    stamp(a,3)
    nonce_get(a,'l',lambda: vm.wait('n'))
    a('s_branch L_bq')
    ldq=list(vm.q)
    a.label('L_cons1')
    a.c('==== consumer P1')
    if OPT['prio']: a(f's_setprio {OPT["prio"]}')
    a(f's_and_b32 s{S_WM}, s{S_W}, 1')
    a(f's_lshr_b32 s{S_WN}, s{S_W}, 1')
    a(f'v_lshrrev_b32 v{T0}, 1, v{V_M}')
    a(f'v_xor_b32 v{T0}, v{T0}, v{V_G}')
    a(f'v_lshlrev_b32 v{T0}, 4, v{T0}')
    a(f's_mul_i32 s{S_T0}, s{S_WM}, 6144')
    a(f'v_lshl_add_u32 v{T1}, v{V_M}, 7, s{S_T0}')
    a(f'v_add_u32 v12, v{T0}, v{T1}')
    a('v_xor_b32 v13, 64, v12')
    a(f'v_add_u32 v14, {2*STAGE}, v12')
    a(f'v_add_u32 v15, {2*STAGE}, v13')
    baddr_calc(a,False)
    a(f's_cmp_ge_u32 s{S_W}, 2')
    a('s_cbranch_scc1 L_kvV')
    for i in range(4):
        a(f'v_or_b32 v{T0}, {i<<2}, v{V_G}')
        a(f'v_xor_b32 v{T0}, v{T0}, v{V_M}')
        a(f'v_lshlrev_b32 v{T0}, 4, v{T0}')
        a(f'v_lshl_add_u32 v{V_KV[i]}, v{V_G}, 8, v{T0}')
    a('s_branch L_kvdone')
    a.label('L_kvV')
    for i in range(4):
        a(f'v_or_b32 v{T0}, {(i&1)<<2}, v{V_G}')
        a(f'v_lshlrev_b32 v{T0}, 1, v{T0}')
        a(f'v_xor_b32 v{T0}, v{T0}, v{V_M}')
        a(f'v_lshlrev_b32 v{T0}, 4, v{T0}')
        a(f'v_lshl_add_u32 v{V_KV[i]}, v{V_G}, 8, v{T0}')
    a.label('L_kvdone')
    a(f's_mul_i32 s{S_KVM}, s{S_W}, 12288')
    a(f's_add_u32 s{S_KVM}, s{S_KVM}, {KVBASE}')
    a('s_waitcnt lgkmcnt(0)')
    a(f's_lshl_b32 s{S_T0}, s{S_BP}, 1')
    a(f's_add_u32 s{S_T0}, s{S_T0}, s{S_WM}')
    a(f's_lshl_b32 s{S_T0}, s{S_T0}, 5')
    a(f's_add_u32 s{S_T0}, s{S_T0}, s{S_HEAD}')
    a(f's_mul_i32 s{S_T0}, s{S_T0}, 12288')
    a(f's_cmp_ge_u32 s{S_W}, 2')
    a(f's_cselect_b32 s{S_T1}, s{S_VP}, s{S_KP}')
    a(f's_cselect_b32 s{S_T2}, s{S_VP+1}, s{S_KP+1}')
    srd(a,R_KV,S_T1,SZ_KV,S_T0)
    late_srds(a)
    a(f's_or_b32 s{S_T0}, s2, s{S_W}')
    a(f's_cmp_lg_u32 s{S_T0}, 0')
    a('s_cbranch_scc1 L_nonon')
    a(f's_memrealtime s[{S_N}:{S_N+1}]')
    a('s_waitcnt lgkmcnt(0)')
    a(f's_or_b32 s{S_N+1}, s{S_N+1}, 0x80000000')
    a(f'v_mov_b32 v{V_N}, s{S_N}')
    a(f'v_mov_b32 v{V_N+1}, s{S_N+1}')
    a(f'v_mov_b32 v{T0}, 0')
    a(f'buffer_store_dwordx2 v[{V_N}:{V_N+1}], v{T0}, s[{R_DBG}:{R_DBG+3}], 0 offen sc1')
    a.label('L_nonon')
    kvnt=' nt' if OPT['kvnt'] else ''
    def kvpair(p):
        grp=p>>1; L=[]
        L.append(f's_add_u32 m0, s{S_KVM}, {grp*4096}')
        L.append(f's_mov_b32 s{S_T3}, {grp*4096}')
        for i in (2*(p&1),2*(p&1)+1):
            off=f' offset:{i*1024}' if i else ''
            L.append(f'buffer_load_dwordx4 v{V_KV[i]}, s[{R_KV}:{R_KV+3}], s{S_T3} offen{off}{kvnt} lds')
        return L
    if OPT['kvmode']==1:
        for p in range(6):
            for x in kvpair(p): a(x)
    stamp(a,1)
    a('s_barrier')
    stamp(a,2)
    if OPT['stamps']: a('s_waitcnt lgkmcnt(0)')
    ex={}
    k0=OPT['kvst']
    if OPT['kvmode']==0:
        for p in range(6): ex[k0+p]=kvpair(p)
        nst=k0+6
    elif OPT['kvmode']==2:
        ex[k0]=sum((kvpair(p) for p in range(6)),[])
        nst=max(k0+1,6)
    elif OPT['kvmode']==3:
        ex[k0]=sum((kvpair(p) for p in range(3)),[])
        ex[k0+1]=sum((kvpair(p) for p in range(3,6)),[])
        nst=max(k0+2,6)
    else:
        nst=6
    nst=min(nst,15)
    ex.setdefault(nst,[])
    ex[nst]+= [f'v_mov_b32 v{T0}, 0', f'buffer_load_dwordx2 v[{V_N}:{V_N+1}], v{T0}, s[{R_DBG}:{R_DBG+3}], 0 offen sc1']
    consumer_loop(a, extra2=ex)
    stamp(a,3)
    a.c('Q to LDS')
    a(f's_mul_i32 s{S_T0}, s{S_WM}, {STAGE}')
    a(f's_lshl_b32 s{S_T1}, s{S_WN}, 11')
    a(f's_add_u32 s{S_T0}, s{S_T0}, s{S_T1}')
    a(f's_add_u32 s{S_T0}, s{S_T0}, {2*STAGE}')
    a(f'v_lshrrev_b32 v1, 1, v{V_G}')
    a('v_lshlrev_b32 v1, 8, v1')
    a(f'v_and_b32 v2, 1, v{V_G}')
    a('v_lshl_add_u32 v1, v2, 3, v1')
    a(f'v_lshl_add_u32 v1, v{V_M}, 4, v1')
    a(f'v_add_u32 v1, s{S_T0}, v1')
    for t in range(4):
        for mt in range(3):
            ac=ACC+(t*3+mt)*4
            r=FA+((t*3+mt)%6)*2
            a(f'v_cvt_pk_bf16_f32 v{r}, v{ac}, v{ac+1}')
            a(f'v_cvt_pk_bf16_f32 v{r+1}, v{ac+2}, v{ac+3}')
            a(f'ds_write_b64 v1, v[{r}:{r+1}] offset:{mt*4096+(t>>1)*1024+(t&1)*512}')
    nonce_get(a,'c',lambda: a('s_waitcnt vmcnt(0)'))
    a('s_waitcnt lgkmcnt(0)')
    a.label('L_bq')
    a('s_barrier')
    stamp(a,4)
    a('s_waitcnt lgkmcnt(0)')
    a(f's_cmp_ge_u32 s{S_W}, 6')
    a('s_cbranch_scc1 L_pref')
    AV=240
    a(f's_mov_b32 s{S_L2E}, {LOG2E}')
    a(f's_cmp_ge_u32 s{S_W}, 3')
    a(f's_cselect_b32 s{S_BB}, 1, 0')
    a(f's_mul_i32 s{S_MT}, s{S_BB}, 3')
    a(f's_sub_u32 s{S_MT}, s{S_W}, s{S_MT}')
    a(f's_mul_i32 s{S_T0}, s{S_BB}, {STAGE}')
    a(f's_lshl_b32 s{S_T1}, s{S_MT}, 12')
    a(f's_add_u32 s{S_T0}, s{S_T0}, s{S_T1}')
    a(f's_add_u32 s{S_T0}, s{S_T0}, {2*STAGE}')
    vQ=AV; vK=AV+1; vV=AV+5
    a(f'v_lshl_add_u32 v{vQ}, v0, 4, s{S_T0}')
    a(f's_mul_i32 s{S_T0}, s{S_BB}, 12288')
    a(f's_add_u32 s{S_T0}, s{S_T0}, {KVBASE}')
    a(f'v_xor_b32 v{vK}, v{V_G}, v{V_M}')
    a(f'v_lshlrev_b32 v{vK}, 4, v{vK}')
    a(f'v_lshl_add_u32 v{vK}, v{V_M}, 8, v{vK}')
    a(f'v_add_u32 v{vK}, s{S_T0}, v{vK}')
    a(f'v_xor_b32 v{vK+1}, 64, v{vK}')
    a(f'v_xor_b32 v{vK+2}, 0x80, v{vK}')
    a(f'v_xor_b32 v{vK+3}, 0xc0, v{vK}')
    QF=80; KF=96; S=32; X=44; TP=56; PP=68; VF32=192; VF16=224; OA=144; OP=176
    for U in range(4): a(f'ds_read_b128 v[{QF+4*U}:{QF+4*U+3}], v{vQ} offset:{U*1024}')
    for t in range(2):
        for U in range(4): a(f'ds_read_b128 v[{KF+(t*4+U)*4}:{KF+(t*4+U)*4+3}], v{vK+U} offset:{t*4096}')
    a(f'v_lshrrev_b32 v{T0}, 2, v{V_M}')
    a(f'v_and_b32 v{T1}, 3, v0')
    a(f'v_lshl_add_u32 v{T2}, v{V_G}, 2, v{T0}')
    a(f'v_lshlrev_b32 v{T2}, 8, v{T2}')
    a(f'v_and_b32 v{T3}, 1, v{T1}')
    a(f'v_lshl_add_u32 v{T2}, v{T3}, 3, v{T2}')
    a(f'v_and_b32 v{T3}, 1, v{V_G}')
    a(f'v_lshlrev_b32 v{T3}, 3, v{T3}')
    a(f'v_lshl_add_u32 v{T3}, v{T0}, 1, v{T3}')
    a(f'v_lshrrev_b32 v{T1}, 1, v{T1}')
    a(f'v_xor_b32 v{T1}, v{T1}, v{T3}')
    a(f'v_lshl_add_u32 v{T2}, v{T1}, 4, v{T2}')
    a(f's_add_u32 s{S_T0}, s{S_T0}, 24576')
    a(f'v_add_u32 v{vV}, s{S_T0}, v{T2}')
    for t in range(1,8): a(f'v_xor_b32 v{vV+t}, {32*t}, v{vV}')
    a('s_waitcnt lgkmcnt(4)')
    for U in range(4):
        a(f'v_mfma_f32_16x16x32_bf16 v[{S}:{S+3}], v[{KF+U*4}:{KF+U*4+3}], v[{QF+4*U}:{QF+4*U+3}], '+('0' if U==0 else f'v[{S}:{S+3}]'))
    for U in range(4): a(f'ds_read_b128 v[{KF+(8+U)*4}:{KF+(8+U)*4+3}], v{vK+U} offset:8192')
    a('s_waitcnt lgkmcnt(4)')
    for U in range(4):
        a(f'v_mfma_f32_16x16x32_bf16 v[{S+4}:{S+7}], v[{KF+(4+U)*4}:{KF+(4+U)*4+3}], v[{QF+4*U}:{QF+4*U+3}], '+('0' if U==0 else f'v[{S+4}:{S+7}]'))
    a('s_waitcnt lgkmcnt(0)')
    for U in range(4):
        a(f'v_mfma_f32_16x16x32_bf16 v[{S+8}:{S+11}], v[{KF+(8+U)*4}:{KF+(8+U)*4+3}], v[{QF+4*U}:{QF+4*U+3}], '+('0' if U==0 else f'v[{S+8}:{S+11}]'))
    def vreads(ts):
        for t in ts:
            a(f'ds_read_b64_tr_b16 v[{VF32+4*t}:{VF32+4*t+1}], v{vV+t}')
            a(f'ds_read_b64_tr_b16 v[{VF32+4*t+2}:{VF32+4*t+3}], v{vV+t} offset:4096')
            a(f'ds_read_b64_tr_b16 v[{VF16+2*t}:{VF16+2*t+1}], v{vV+t} offset:8192')
    vreads(range(0,4))
    for p in range(6): a(f'v_cvt_pk_bf16_f32 v{TP+p}, v{S+2*p}, v{S+2*p+1}')
    for p in range(6):
        a(f'v_lshlrev_b32 v{X+2*p}, 16, v{TP+p}')
        a(f'v_and_b32 v{X+2*p+1}, 0xffff0000, v{TP+p}')
    for i in range(12): a(f'v_mul_f32 v{X+i}, {SCALE}, v{X+i}')
    for p in range(6): a(f'v_cvt_pk_bf16_f32 v{TP+p}, v{X+2*p}, v{X+2*p+1}')
    for p in range(6):
        a(f'v_lshlrev_b32 v{X+2*p}, 16, v{TP+p}')
        a(f'v_and_b32 v{X+2*p+1}, 0xffff0000, v{TP+p}')
    a('s_waitcnt lgkmcnt(0)')
    vreads(range(4,8))
    M=62; M2=63
    a(f'v_max3_f32 v{M}, v{X}, v{X+1}, v{X+2}')
    for i in range(3,11,2): a(f'v_max3_f32 v{M}, v{M}, v{X+i}, v{X+i+1}')
    a(f'v_max_f32 v{M}, v{M}, v{X+11}')
    for sw in ('v_permlane32_swap_b32','v_permlane16_swap_b32'):
        a(f'v_mov_b32 v{M2}, v{M}')
        a(f'{sw} v{M}, v{M2}')
        a(f'v_max_f32 v{M}, v{M}, v{M2}')
    a(f'v_mul_f32 v{M}, s{S_L2E}, v{M}')
    for i in range(12): a(f'v_fma_f32 v{X+i}, v{X+i}, s{S_L2E}, -v{M}')
    for i in range(12): a(f'v_exp_f32 v{X+i}, v{X+i}')
    SM=64
    a(f'v_add_f32 v{SM}, v{X}, v{X+1}')
    for i in range(2,12): a(f'v_add_f32 v{SM}, v{SM}, v{X+i}')
    for sw in ('v_permlane32_swap_b32','v_permlane16_swap_b32'):
        a(f'v_mov_b32 v{M2}, v{SM}')
        a(f'{sw} v{SM}, v{M2}')
        a(f'v_add_f32 v{SM}, v{SM}, v{M2}')
    a(f'v_rcp_f32 v{SM}, v{SM}')
    for i in range(12): a(f'v_mul_f32 v{X+i}, v{X+i}, v{SM}')
    for p in range(6): a(f'v_cvt_pk_bf16_f32 v{PP+p}, v{X+2*p}, v{X+2*p+1}')
    a('s_waitcnt lgkmcnt(0)')
    for t in range(8):
        a(f'v_mfma_f32_16x16x32_bf16 v[{OA+4*t}:{OA+4*t+3}], v[{VF32+4*t}:{VF32+4*t+3}], v[{PP}:{PP+3}], 0')
    for t in range(8):
        a(f'v_mfma_f32_16x16x16_bf16 v[{OA+4*t}:{OA+4*t+3}], v[{VF16+2*t}:{VF16+2*t+1}], v[{PP+4}:{PP+5}], v[{OA+4*t}:{OA+4*t+3}]')
    a(f's_lshl_b32 s{S_T0}, s{S_BP}, 5')
    a(f's_add_u32 s{S_T0}, s{S_T0}, s{S_HEAD}')
    a(f's_mul_i32 s{S_T0}, s{S_T0}, 24576')
    a(f's_mul_i32 s{S_T1}, s{S_BB}, 6144')
    a(f's_lshl_b32 s{S_T2}, s{S_MT}, 11')
    a(f's_add_u32 s{S_T1}, s{S_T1}, s{S_T2}')
    a(f's_add_u32 s{S_T0}, s{S_T0}, s{S_T1}')
    a(f's_add_u32 s{S_T2}, s{S_T0}, 12288')
    a(f'v_lshlrev_b32 v{vQ}, 4, v0')
    a(f'v_add_u32 v{vK}, s{S_T1}, v{vQ}')
    a(f'v_add_u32 v{vK+1}, {STAGE}, v{vK}')
    for u in range(4):
        for h2 in range(2):
            t=2*u+h2
            a(f'v_cvt_pk_bf16_f32 v{OP+4*u+2*h2}, v{OA+4*t}, v{OA+4*t+1}')
            a(f'v_cvt_pk_bf16_f32 v{OP+4*u+2*h2+1}, v{OA+4*t+2}, v{OA+4*t+3}')
        off=f' offset:{(u&1)*1024}' if u&1 else ''
        a(f'buffer_store_dwordx4 v[{OP+4*u}:{OP+4*u+3}], v{vQ}, s[{R_WS}:{R_WS+3}], s{S_T0 if u<2 else S_T2} offen{off} sc1')
        a(f'ds_write_b128 v{vK+(u>>1)}, v[{OP+4*u}:{OP+4*u+3}]{off}')
    a(f's_lshl_b32 s{S_T0}, s{S_KS}, 3')
    a(f's_add_u32 s{S_T0}, s{S_T0}, s{S_BP}')
    a(f's_lshl_b32 s{S_T0}, s{S_T0}, 9')
    a(f's_lshl_b32 s{S_T1}, s{S_NT}, 6')
    a(f's_add_u32 s{S_T0}, s{S_T0}, s{S_T1}')
    a(f's_lshl_b32 s{S_T1}, s{S_W}, 3')
    a(f's_add_u32 s{S_T0}, s{S_T0}, s{S_T1}')
    a(f's_add_u32 s{S_KVM}, s{S_T0}, {WS_FO}')
    a(f'v_mov_b32 v{T5}, 0')
    stamp(a,5)
    a(f's_cmp_ge_u32 s{S_W}, 4')
    a('s_cbranch_scc1 L_ld45')
    a.c('==== consumer P2')
    a(f's_mul_i32 s{S_T0}, s{S_WM}, 6144')
    a(f'v_lshl_add_u32 v12, v0, 4, s{S_T0}')
    a('v_add_u32 v13, 1024, v12')
    a(f'v_add_u32 v14, {2*STAGE}, v12')
    a(f'v_add_u32 v15, {2*STAGE}, v13')
    baddr_calc(a,True)
    a('s_waitcnt lgkmcnt(0)')
    a('s_barrier')
    stamp(a,6)
    if OPT['stamps']: a('s_waitcnt lgkmcnt(0)')
    def sig():
        a('s_waitcnt vmcnt(0)')
        flag_store(a,S_KVM,T5)
        stamp(a,7)
    consumer_loop(a, prebar={1:sig})
    stamp(a,8)
    a.c('partials')
    a(f's_lshl_b32 s{S_T3}, s{S_NT}, 3')
    a(f's_add_u32 s{S_T3}, s{S_T3}, s{S_BP}')
    a('v_lshlrev_b32 v1, 4, v0')
    for t in range(1,4):
        a(f's_add_u32 s{S_T0}, s{S_KS}, {t}')
        a(f's_and_b32 s{S_T0}, s{S_T0}, 3')
        a(f's_lshl_b32 s{S_T1}, s{S_T3}, 2')
        a(f's_add_u32 s{S_T0}, s{S_T0}, s{S_T1}')
        a(f's_lshl_b32 s{S_T0}, s{S_T0}, 2')
        a(f's_add_u32 s{S_T0}, s{S_T0}, s{S_W}')
        a(f's_mul_i32 s{S_T0}, s{S_T0}, 9216')
        a(f's_add_u32 s{S_T0}, s{S_T0}, {WS_P+(t-1)*3072}')
        for mt in range(3):
            ac=ACC+(t*3+mt)*4
            off=f' offset:{mt*1024}' if mt else ''
            a(f'buffer_store_dwordx4 v[{ac}:{ac+3}], v1, s[{R_WS}:{R_WS+3}], s{S_T0} offen{off} sc1')
    a(f's_lshl_b32 s{S_T0}, s{S_T3}, 7')
    a(f's_lshl_b32 s{S_T1}, s{S_W}, 5')
    a(f's_add_u32 s{S_T0}, s{S_T0}, s{S_T1}')
    a(f's_add_u32 s{S_T2}, s{S_T0}, {WS_FP}')
    a(f's_lshl_b32 s{S_T1}, s{S_KS}, 3')
    a(f's_add_u32 s{S_KVM}, s{S_T2}, s{S_T1}')
    a('v_and_b32 v2, 3, v0')
    a('v_lshlrev_b32 v2, 3, v2')
    a(f's_lshl_b32 s{S_T1}, s{S_T3}, 2')
    a(f's_add_u32 s{S_T1}, s{S_T1}, s{S_KS}')
    a(f's_lshl_b32 s{S_T1}, s{S_T1}, 2')
    a(f's_add_u32 s{S_T1}, s{S_T1}, s{S_W}')
    a(f's_mul_i32 s{S_T1}, s{S_T1}, 9216')
    a(f's_add_u32 s{S_AO}, s{S_T1}, {WS_P}')
    a(f's_mul_i32 s{S_T0}, s{S_BP}, 96')
    a(f's_mul_i32 s{S_T1}, s{S_WM}, 48')
    a(f's_add_u32 s{S_T0}, s{S_T0}, s{S_T1}')
    a(f's_lshl_b32 s{S_T0}, s{S_T0}, 11')
    a(f's_lshl_b32 s{S_T1}, s{S_NT}, 8')
    a(f's_add_u32 s{S_T0}, s{S_T0}, s{S_T1}')
    a(f's_lshl_b32 s{S_T1}, s{S_WN}, 7')
    a(f's_add_u32 s{S_T0}, s{S_T0}, s{S_T1}')
    a(f's_lshl_b32 s{S_T1}, s{S_KS}, 5')
    a(f's_add_u32 s{S_BO}, s{S_T0}, s{S_T1}')
    a(f'v_lshlrev_b32 v3, 11, v{V_M}')
    a(f'v_lshl_add_u32 v3, v{V_G}, 3, v3')
    a('s_waitcnt vmcnt(0)')
    flag_store(a,S_KVM,T5)
    stamp(a,9)
    poll(a,'p',2,S_T2,4)
    stamp(a,10)
    R=80
    for t in range(3):
        a(f's_add_u32 s{S_T0}, s{S_AO}, {t*3072}')
        for mt in range(3):
            r=R+(t*3+mt)*4
            off=f' offset:{mt*1024}' if mt else ''
            a(f'buffer_load_dwordx4 v[{r}:{r+3}], v1, s[{R_WS}:{R_WS+3}], s{S_T0} offen{off} sc1')
    for mt in range(3):
        ac=ACC+mt*4
        if mt==0: a('s_waitcnt vmcnt(0)')
        for e in range(4):
            a(f'v_add_f32 v{ac+e}, v{ac+e}, v{R+(0*3+mt)*4+e}')
            a(f'v_add_f32 v{ac+e}, v{ac+e}, v{R+(1*3+mt)*4+e}')
            a(f'v_add_f32 v{ac+e}, v{ac+e}, v{R+(2*3+mt)*4+e}')
        a(f'v_cvt_pk_bf16_f32 v{ac}, v{ac}, v{ac+1}')
        a(f'v_cvt_pk_bf16_f32 v{ac+1}, v{ac+2}, v{ac+3}')
        a(f'buffer_store_dwordx2 v[{ac}:{ac+1}], v3, s[{R_OUT}:{R_OUT+3}], s{S_BO} offen')
        if mt<2: a(f's_add_u32 s{S_BO}, s{S_BO}, {16*2048}')
    if OPT['stamps']==3:
        a('s_waitcnt vmcnt(0)')
        stamp(a,11)
        a('s_waitcnt lgkmcnt(0)')
        a(f's_xor_b32 s{S_T0}, s2, {OPT["dbgwg"]}')
        a(f's_or_b32 s{S_T0}, s{S_T0}, s{S_W}')
        a(f's_cmp_eq_u32 s{S_T0}, 0')
        a('s_cbranch_scc0 L_end')
        a('v_mov_b32 v2, 0')
        for j in range(NST):
            a(f's_sub_u32 s{S_T0}, s{S_ST+2*j}, s{S_N}')
            a(f'v_mov_b32 v4, s{S_T0}')
            a(f'buffer_store_dword v4, v2, s[{R_DBG}:{R_DBG+3}], 0 offen offset:{8+4*j}')
            a('s_nop 1')
    elif OPT['stamps']:
        a('s_waitcnt vmcnt(0)')
        stamp(a,11)
        a(f's_cmp_eq_u32 s{S_W}, 0')
        a('s_cbranch_scc0 L_end')
        stamp_flush(a,'c',0)
    a('s_endpgm')
    a.label('L_ld45')
    a('s_waitcnt vmcnt(0) lgkmcnt(0)')
    flag_store(a,S_KVM,T5)
    a('s_branch L_ldbx')
    a.label('L_pref')
    a(f's_lshl_b32 s{S_T0}, s{S_NT}, 7')
    a(f's_mul_i32 s{S_T1}, s{S_BP}, 96')
    a(f's_add_u32 s{S_T0}, s{S_T0}, s{S_T1}')
    a(f's_sub_u32 s{S_T1}, s{S_W}, 6')
    a(f's_mul_i32 s{S_T1}, s{S_T1}, 48')
    a(f's_add_u32 s{S_T0}, s{S_T0}, s{S_T1}')
    a(f's_add_u32 s{S_T0}, s{S_T0}, 256')
    a(f'v_lshlrev_b32 v{T0}, 11, v{V_G}')
    a(f'v_lshl_add_u32 v{T0}, v{V_M}, 4, v{T0}')
    for k in range(12):
        a(f's_and_b32 s{S_T1}, s{S_T0}, 1023')
        a(f's_lshl_b32 s{S_T1}, s{S_T1}, 11')
        a(f'buffer_load_dwordx4 v[{V_JUNK}:{V_JUNK+3}], v{T0}, s[{R_WO}:{R_WO+3}], s{S_T1} offen')
        if k<11: a(f's_add_u32 s{S_T0}, s{S_T0}, 4')
    a('s_waitcnt vmcnt(12)')
    a.label('L_ldbx')
    a.c('==== loader P2')
    vm=VM(a)
    a(f's_sub_u32 s{S_LI}, s{S_W}, 4')
    a(f'v_lshlrev_b32 v1, 4, v0')
    a(f's_mul_i32 s{S_T0}, s{S_LI}, 3072')
    a(f'v_add_u32 v1, s{S_T0}, v1')
    a(f's_lshl_b32 s{S_T0}, s{S_BP}, 5')
    a(f's_lshl_b32 s{S_T1}, s{S_KS}, 3')
    a(f's_add_u32 s{S_T0}, s{S_T0}, s{S_T1}')
    a(f's_mul_i32 s{S_T3}, s{S_T0}, 24576')
    a(f'v_lshrrev_b32 v2, 3, v0')
    a(f'v_and_b32 v3, 7, v0')
    a(f'v_min_u32 v3, 5, v3')
    a(f'v_lshlrev_b32 v3, 3, v3')
    a(f'v_lshl_add_u32 v2, v2, 6, v3')
    a(f's_lshl_b32 s{S_T0}, s{S_KS}, 3')
    a(f's_add_u32 s{S_T0}, s{S_T0}, s{S_BP}')
    a(f's_lshl_b32 s{S_T0}, s{S_T0}, 9')
    a(f's_add_u32 s{S_KVM}, s{S_T0}, {WS_FO}')
    fstamp(a,'preBX')
    a('s_barrier')
    stamp(a,6)
    fstamp(a,'BX')
    a('s_barrier')
    fstamp(a,'2B0')
    poll(a,'o',2,S_KVM,12)
    stamp(a,7)
    fstamp(a,'poll')
    def offs(st):
        a(f's_lshl_b32 s{S_T0}, s{S_NT}, 1')
        a(f's_add_u32 s{S_T0}, s{S_T0}, {st}')
        a(f's_and_b32 s{S_T0}, s{S_T0}, 15')
        a(f's_lshl_b32 s{S_BO}, s{S_T0}, 17')
        a(f's_mul_i32 s{S_AO}, s{S_T0}, 12288')
        a(f's_add_u32 s{S_AO}, s{S_AO}, s{S_T3}')
    VA2=[1,1,1]
    offs(2); issueA(R_WS,VA2,2,2,' sc1')
    offs(3); issueA(R_WS,VA2,3,3,' sc1')
    offs(4); issueA(R_WS,VA2,4,4,' sc1'); issueB(R_WO,V_B2,4,4)
    for st in range(1,16):
        if st<15: vm.wait(st+1)
        fstamp(a,f'2w{st+1}')
        a('s_barrier')
        fstamp(a,f'2B{st}')
        if st==1: stamp(a,8)
        if st+4<16:
            offs(st+4); issueA(R_WS,VA2,st+4,st+4,' sc1'); issueB(R_WO,V_B2,st+4,st+4)
    fstamp_flush(a)
    if OPT['stamps'] in (1,2):
        stamp(a,9)
        a(f's_memtime s[{S_ST+22}:{S_ST+23}]')
        a(f's_cmp_eq_u32 s{S_W}, 4')
        a('s_cbranch_scc0 L_end')
        stamp_flush(a,'l',1)
    a.label('L_end')
    a('s_endpgm')
    return a

def kd(name, vg):
    return f""".p2align 6
.amdhsa_kernel {name}
  .amdhsa_next_free_vgpr {vg}
  .amdhsa_next_free_sgpr 100
  .amdhsa_accum_offset {vg}
  .amdhsa_group_segment_fixed_size 0
  .amdhsa_kernarg_size 64
  .amdhsa_user_sgpr_count 2
  .amdhsa_user_sgpr_kernarg_segment_ptr 1
  .amdhsa_system_sgpr_workgroup_id_x 1
.end_amdhsa_kernel
"""

def build():
    ref=open('cdna_kernels/'+NAME+'.s.ref').read().split('\n')
    hdr=[l for l in ref if l.startswith(';') and '@launch' not in l and 'Override' not in l and 'grid=ceil' not in l]
    out='\n'.join(hdr[:9])+'\n'
    if OPT['aslist']:
        global K
        K='mha_fused_kernel'
        if OPT['aslist']==3: out+='; @launch kernel=mha_empty_kernel grid=(256,1,1) block=(256,1,1) lds=0\n'
        out+='; @launch kernel=mha_fused_kernel grid=(256,1,1) block=(512,1,1) lds=163840\n'
        if OPT['aslist']==2: out+='; @launch kernel=mha_fused_kernel grid=(256,1,1) block=(512,1,1) lds=163840\n'
    else:
        out+='; @launch grid=(256,1,1) block=(512,1,1) lds=163840\n'
    out+='.amdgcn_target "amdgcn-amd-amdhsa--gfx950"\n.text\n'
    out+=build_kernel().text()
    if OPT['aslist']==3:
        out+='.globl mha_empty_kernel\n.p2align 8\n.type mha_empty_kernel,@function\nmha_empty_kernel:\n  s_endpgm\n'
    out+='.section .rodata,"a"\n'
    out+=kd(K,256)
    if OPT['aslist']==3: out+=kd('mha_empty_kernel',8)
    return out

if __name__=='__main__':
    dst='cdna_kernels/'+NAME+'.s'
    for x in sys.argv[1:]:
        if '=' in x:
            k,v=x.split('='); OPT[k]=int(v)
        else: dst=x
    open(dst,'w').write(build())
    if '_names' in OPT: open(dst+'.names','w').write('\n'.join(OPT['_names'])+'\n')
    print('wrote',dst)
```

```python
import sys
from asmlib import Asm

NAME='standalone__mha_block_cached__near_ridge'
K=NAME+'_kernel'
STAGE=28672
KVBASE=4*STAGE
WS_O=0
WS_P=8<<20
WS_FO=20<<20
WS_FP=(20<<20)+65536
SZ_WS=21<<20
SZ_X=768*2048; SZ_W=1024*8192; SZ_KV=16*32*12288; SZ_OUT=768*2048
SCALE='0x3db504f3'; LOG2E='0x3fb8aa3b'
SPIN=1<<15

OPT=dict(g2=1, ofl=1, nokv=0, nojunk=0, bpmode=1, map=0, wqnt=0, xnt=0, wont=0, wsoff=0, stamps=0, kvnt=1, rot=1, kvst=0, prio=0, npro=3, dbgwg=0, aslist=0, kvmode=0, front=0, nomfma=0, noa=0, lprio=0, fall=0, nob=0, nords=0, osc=1, jst=14, nochk=0, h2opt=1, probe=0, tlb=0, kvtab=0x76543210, kvc8=0, kvsp=2, kvcl=0, hord=0, pq=0, pexp=3, rnd=0, jnt=0, cnt=0)

V_A=[1,2,3]; V_B=[4,5,6,7]; V_B2=[8,9,10,11]
V_KV=[8,9,10,11]
V_AADDR=[[12,13],[14,15]]; V_BADDR=[[16,17,18,19],[20,21,22,23]]
V_G=24; V_M=25
T0=26; T1=27; T2=28; T3=29; T4=30; T5=31
ACC=32; FA=80; FB=104
V_N=140
V_JUNK=12
V_NV=254; V_CS=253; V_CS2=255
WTS=[0x27d59e37,0xeb2f79b9,0x165785eb,0x67b4c2b2]
S_XP=4; S_KP=6; S_VP=8; S_WQP=10; S_WOP=12; S_OUTP=14; S_DBGP=16; S_WSP=18
R_X=20; R_WQ=24; R_KV=28; R_WS=32; R_WO=84; R_OUT=88; R_DBG=92
S_W=36; S_HEAD=37; S_BP=38; S_KS=39; S_NT=40
S_AO=41; S_BO=42; S_M0A=43; S_M0B=44
S_T0=45; S_T1=46; S_T2=47; S_KVM=48; S_T3=49; S_WM=50; S_WN=51
S_BB=52; S_MT=53; S_CUR=54; S_CNT=55; S_L2E=56; S_LI=57
S_N=58
S_ST=60
S_WT=98
NST=12

def srd(a, d, base, size, add=None):
    if add is None:
        a(f's_mov_b32 s{d}, s{base}')
        a(f's_mov_b32 s{d+1}, s{base+1}')
        a(f's_mov_b32 s{d+2}, {size}')
    else:
        a(f's_add_u32 s{d}, s{base}, s{add}')
        a(f's_addc_u32 s{d+1}, s{base+1}, 0')
        a(f's_sub_u32 s{d+2}, {size}, s{add}')
    a(f's_mov_b32 s{d+3}, 0x20000')

def stamp(a,j):
    if OPT['stamps']: a(f's_memrealtime s[{S_ST+2*j}:{S_ST+2*j+1}]')
def stamp_flush(a,tag,li):
    if not OPT['stamps']: return
    a('s_waitcnt lgkmcnt(0)')
    a(f's_mov_b32 s{S_T0}, {(64<<20)+li*256*NST*8}')
    a(f's_mul_i32 s{S_T1}, s2, {NST*8}')
    a(f's_add_u32 s{S_T0}, s{S_T0}, s{S_T1}')
    srd(a,R_X,S_WSP,256<<20,S_T0)
    a('v_mov_b32 v2, 0')
    for j in range(NST):
        a(f'v_mov_b32 v4, s{S_ST+2*j}')
        a(f'v_mov_b32 v5, s{S_ST+2*j+1}')
        a(f'buffer_store_dwordx2 v[4:5], v2, s[{R_X}:{R_X+3}], 0 offen offset:{8*j}')
        a('s_nop 1')

FINE=[]
V_FS=200
def fstamp(a,name):
    if OPT['stamps']!=2: return
    if not OPT['fall'] and name not in ('start','B-1','B3','B7','B8','B11','B12','B15','preBX','BX','poll','2B1','2B2','2B12','2B15'): return
    i=len(FINE)
    if i>0:
        a('s_waitcnt lgkmcnt(0)')
        a(f'v_writelane_b32 v{V_FS+((i-1)>>6)}, s96, {(i-1)&63}')
    a('s_memrealtime s[96:97]')
    FINE.append(name)
def fstamp_flush(a):
    if OPT['stamps']!=2: return
    i=len(FINE)
    a('s_waitcnt lgkmcnt(0)')
    a(f'v_writelane_b32 v{V_FS+((i-1)>>6)}, s96, {(i-1)&63}')
    a(f's_cmp_eq_u32 s{S_W}, 6')
    a('s_cbranch_scc0 L_nofs')
    a(f's_mov_b32 s{S_T0}, {(65<<20)}')
    a(f's_lshl_b32 s{S_T1}, s2, 9')
    a(f's_add_u32 s{S_T0}, s{S_T0}, s{S_T1}')
    srd(a,R_X,S_WSP,256<<20,S_T0)
    a('v_lshlrev_b32 v2, 2, v0')
    a(f'buffer_store_dword v{V_FS}, v2, s[{R_X}:{R_X+3}], 0 offen')
    a(f'buffer_store_dword v{V_FS+1}, v2, s[{R_X}:{R_X+3}], 0 offen offset:256')
    a.label('L_nofs')
    OPT['_names']=list(FINE)

class VM:
    def __init__(s,a): s.a=a; s.q=[]
    def issue(s,text,tag):
        s.a(text); s.q.append(tag)
    def note(s,tag): s.q.append(tag)
    def wait(s,tag):
        if tag not in s.q: return
        idx=max(i for i,t in enumerate(s.q) if t==tag)
        n=len(s.q)-1-idx
        s.a(f's_waitcnt vmcnt({n})')
        del s.q[:idx+1]
    def waitall(s):
        s.a('s_waitcnt vmcnt(0)'); s.q=[]

def frag_reads(st,ks):
    if OPT['nords']: return []
    slot=st%4; se=slot>>1; so=(slot&1)*STAGE
    L=[]
    for mt in range(3):
        r=FA+(ks*3+mt)*4
        L.append(f'ds_read_b128 v[{r}:{r+3}], v{V_AADDR[se][ks]} offset:{so+mt*2048}')
    for t in range(4):
        r=FB+(ks*4+t)*4
        for hh in range(2):
            L.append(f'ds_read_b64_tr_b16 v[{r+2*hh}:{r+2*hh+1}], v{V_BADDR[se][t]} offset:{so+12288+ks*8192+hh*1024}')
    return L
def mfmas(ks, first):
    L=[]
    for t in range(4):
        for mt in range(3):
            ac=ACC+(t*3+mt)*4
            fa=FA+(ks*3+mt)*4; fb=FB+(ks*4+t)*4
            c='0' if first else f'v[{ac}:{ac+3}]'
            L.append(f'v_mfma_f32_16x16x32_bf16 v[{ac}:{ac+3}], v[{fb}:{fb+3}], v[{fa}:{fa+3}], {c}')
    return L
def interleave(a, M, others):
    n=len(M); k=len(others); j=0
    if OPT['nomfma']: M=['s_nop 0']*n
    for i,m in enumerate(M):
        a(m)
        tgt=min(k,((i+1)*k+n-1)//n) if i<n-1 else k
        if OPT['front']: tgt=min(k,(i+1)*OPT['front']) if i<n-1 else k
        while j<tgt:
            if callable(others[j]): others[j]()
            else: a(others[j])
            j+=1

def consumer_loop(a, extra2=None, prebar=None, lastreads=False):
    for x in frag_reads(0,0): a(x)
    for st in range(16):
        a.c(f'---- stage {st}')
        a('s_waitcnt lgkmcnt(0)')
        interleave(a, mfmas(0, st==0), frag_reads(st,1))
        if prebar and st in prebar: prebar[st]()
        a('s_waitcnt lgkmcnt(0)')
        a('s_barrier')
        oth=frag_reads(st+1,0) if st<15 else []
        if extra2 and st in extra2:
            ex=extra2[st]
            oth=oth+ex
        interleave(a, mfmas(1,False), oth)

def baddr_calc(a, rot):
    a(f'v_lshrrev_b32 v{T0}, 2, v{V_M}')
    a(f'v_and_b32 v{T1}, 3, v0')
    a(f'v_lshl_add_u32 v{T2}, v{V_G}, 3, v{T0}')
    a(f'v_lshlrev_b32 v{T2}, 8, v{T2}')
    a(f'v_and_b32 v{T3}, 1, v{T1}')
    a(f'v_lshl_add_u32 v{T2}, v{T3}, 3, v{T2}')
    a(f'v_and_b32 v{T3}, 1, v{V_G}')
    a(f'v_lshlrev_b32 v{T3}, 3, v{T3}')
    a(f'v_lshl_add_u32 v{T3}, v{T0}, 1, v{T3}')
    a(f'v_lshrrev_b32 v{T1}, 1, v{T1}')
    a(f's_lshl_b32 s{S_T0}, s{S_WN}, 3')
    a(f'v_or_b32 v{T1}, s{S_T0}, v{T1}')
    for t in range(4):
        if rot:
            a(f's_add_u32 s{S_T0}, s{S_KS}, {t}')
            a(f's_and_b32 s{S_T0}, s{S_T0}, 3')
            a(f's_lshl_b32 s{S_T0}, s{S_T0}, 1')
            a(f'v_or_b32 v{T0}, s{S_T0}, v{T1}')
        else:
            a(f'v_or_b32 v{T0}, {2*t}, v{T1}')
        a(f'v_xor_b32 v{T0}, v{T0}, v{T3}')
        a(f'v_lshl_add_u32 v{V_BADDR[0][t]}, v{T0}, 4, v{T2}')
        a(f'v_add_u32 v{V_BADDR[1][t]}, {2*STAGE}, v{V_BADDR[0][t]}')

HORD=[(0,0),(0,1),(1,0),(0,2),(0,3),(1,1),(1,2),(1,3)]
def head_of(a, j, dst, tmp):
    if not OPT['hord']:
        a(f's_add_u32 s{dst}, s{S_NT}, {j}')
        a(f's_and_b32 s{dst}, s{dst}, 7')
        return
    o,d=HORD[j]
    a(f's_add_u32 s{dst}, s{S_NT}, {d}')
    a(f's_and_b32 s{dst}, s{dst}, 3')
    a(f's_and_b32 s{tmp}, s{S_NT}, 4')
    if o: a(f's_xor_b32 s{tmp}, s{tmp}, 4')
    a(f's_or_b32 s{dst}, s{dst}, s{tmp}')
def stage_of(a, st, dst, tmp):
    head_of(a, st>>1, dst, tmp)
    a(f's_lshl_b32 s{dst}, s{dst}, 1')
    if st&1: a(f's_add_u32 s{dst}, s{dst}, 1')

def late_srds(a):
    if OPT['wsoff']:
        a(f's_add_u32 s{R_WS}, s{S_WSP}, {OPT["wsoff"]<<20}')
        a(f's_addc_u32 s{R_WS+1}, s{S_WSP+1}, 0')
        a(f's_mov_b32 s{R_WS+2}, {SZ_WS}')
        a(f's_mov_b32 s{R_WS+3}, 0x20000')
    else:
        srd(a,R_WS,S_WSP,SZ_WS,None)
    srd(a,R_DBG,S_DBGP,256,None)
    srd(a,R_OUT,S_OUTP,SZ_OUT,None)
    a(f's_lshl_b32 s{S_T0}, s{S_KS}, 21')
    a(f's_lshl_b32 s{S_T1}, s{S_NT}, 8')
    a(f's_add_u32 s{S_T0}, s{S_T0}, s{S_T1}')
    srd(a,R_WO,S_WOP,SZ_W,S_T0)

def nonce_get(a, tag, vm_wait):
    vm_wait()
    a(f's_mov_b32 s{S_CNT}, {SPIN}')
    a.label(f'Ln_{tag}')
    a(f'v_readfirstlane_b32 s{S_N}, v{V_N}')
    a(f'v_readfirstlane_b32 s{S_N+1}, v{V_N+1}')
    a(f's_cmp_lg_u32 s{S_N+1}, 0')
    a(f's_cbranch_scc1 Lnd_{tag}')
    a(f's_sub_u32 s{S_CNT}, s{S_CNT}, 1')
    a(f's_cmp_eq_u32 s{S_CNT}, 0')
    a(f's_cbranch_scc1 Lnd_{tag}')
    a('s_sleep 2')
    a(f'v_mov_b32 v{T0}, 0')
    a(f'buffer_load_dwordx2 v[{V_N}:{V_N+1}], v{T0}, s[{R_DBG}:{R_DBG+3}], 0 offen sc1')
    a('s_waitcnt vmcnt(0)')
    a(f's_branch Ln_{tag}')
    a.label(f'Lnd_{tag}')
    a(f'v_mov_b32 v{V_NV}, s{S_N}')

def csum(a, cs, regs, first=True):
    for i,r in enumerate(regs):
        a(f'v_dot2_u32_u16 v{cs}, v{r}, s{S_WT+(i&3)}, '+('0' if (first and i==0) else f'v{cs}'))

def vreduce(a, vs, tmp):
    for r in (8,4,2,1):
        for v in vs: a(f'v_add_u32_dpp v{v}, v{v}, v{v} row_ror:{r} row_mask:0xf bank_mask:0xf')
    for sw in ('v_permlane16_swap_b32','v_permlane32_swap_b32'):
        for v,t in zip(vs,tmp): a(f'v_mov_b32 v{t}, v{v}')
        for v,t in zip(vs,tmp): a(f'{sw} v{v}, v{t}')
        for v,t in zip(vs,tmp): a(f'v_add_u32 v{v}, v{v}, v{t}')

def wreduce(a, vs, sd, st):
    for r in (8,4,2,1):
        for v in vs: a(f'v_add_u32_dpp v{v}, v{v}, v{v} row_ror:{r} row_mask:0xf bank_mask:0xf')
    for v,d in zip(vs,sd):
        a(f'v_readlane_b32 s{d}, v{v}, 0')
        a(f'v_readlane_b32 s{st}, v{v}, 16')
        a(f's_add_u32 s{d}, s{d}, s{st}')
        a(f'v_readlane_b32 s{st}, v{v}, 32')
        a(f's_add_u32 s{d}, s{d}, s{st}')
        a(f'v_readlane_b32 s{st}, v{v}, 48')
        a(f's_add_u32 s{d}, s{d}, s{st}')

def weights(a):
    for i in range(4): a(f's_mov_b32 s{S_WT+i}, {hex(WTS[i])}')

def poll(a, tag, voff, soff, vd):
    a(f's_mov_b32 s{S_CNT}, {SPIN}')
    a.label(f'Lp_{tag}')
    a(f'buffer_load_dwordx2 v[{vd}:{vd+1}], v{voff}, s[{R_WS}:{R_WS+3}], s{soff} offen sc1')
    a('s_waitcnt vmcnt(0)')
    a(f'v_cmp_ne_u64 vcc, s[{S_N}:{S_N+1}], v[{vd}:{vd+1}]')
    a(f's_cbranch_vccz Lpd_{tag}')
    a(f's_sub_u32 s{S_CNT}, s{S_CNT}, 1')
    a(f's_cmp_eq_u32 s{S_CNT}, 0')
    a(f's_cbranch_scc0 Lp_{tag}')
    a.label(f'Lpd_{tag}')

def flag_store(a, soff_reg, voff):
    a(f'v_mov_b32 v{V_N}, s{S_N}')
    a(f'v_mov_b32 v{V_N+1}, s{S_N+1}')
    a(f'buffer_store_dwordx2 v[{V_N}:{V_N+1}], v{voff}, s[{R_WS}:{R_WS+3}], s{soff_reg} offen sc1')

def build_kernel():
    a=Asm()
    a.raw(f'.globl {K}\n.p2align 8\n.type {K},@function\n{K}:')
    a('s_cmp_ge_u32 s2, 256')
    a('s_cbranch_scc1 L_end')
    a('s_load_dwordx16 s[4:19], s[0:1], 0')
    for j in range(NST): stamp(a,j)
    a('v_lshrrev_b32 v1, 6, v0')
    a('v_and_b32 v0, 63, v0')
    a(f'v_readfirstlane_b32 s{S_W}, v1')
    a(f'v_lshrrev_b32 v{V_G}, 4, v0')
    a(f'v_and_b32 v{V_M}, 15, v0')
    a(f's_and_b32 s{S_T0}, s2, 7')
    a(f's_lshr_b32 s{S_BP}, s2, 3')
    if OPT['map']==0:
        a(f's_and_b32 s{S_T1}, s{S_BP}, 3')
        a(f's_lshr_b32 s{S_BP}, s{S_BP}, 2')
    else:
        a(f's_lshr_b32 s{S_T1}, s{S_BP}, 3')
        a(f's_and_b32 s{S_BP}, s{S_BP}, 7')
    a(f's_lshl_b32 s{S_HEAD}, s{S_T0}, 2')
    a(f's_add_u32 s{S_HEAD}, s{S_HEAD}, s{S_T1}')
    a(f's_lshr_b32 s{S_KS}, s{S_HEAD}, 3')
    a(f's_and_b32 s{S_NT}, s{S_HEAD}, 7')
    weights(a)
    a(f's_cmp_ge_u32 s{S_W}, 4')
    a('s_cbranch_scc0 L_cons1')
    a.c('==== loader P1')
    if OPT['stamps'] in (1,2): a(f's_memtime s[{S_ST+20}:{S_ST+21}]')
    if OPT['lprio']: a(f's_setprio {OPT["lprio"]}')
    vm=VM(a)
    a(f's_sub_u32 s{S_LI}, s{S_W}, 4')
    if OPT['rot']==2:
        a(f's_lshl_b32 s{S_CUR}, s{S_BP}, 1')
    elif OPT['rot']==3:
        a(f's_and_b32 s{S_CUR}, s{S_BP}, 3')
        a(f's_lshl_b32 s{S_CUR}, s{S_CUR}, 2')
    elif OPT['rot']==4:
        a(f's_and_b32 s{S_CUR}, s{S_BP}, 1')
        a(f's_lshl_b32 s{S_CUR}, s{S_CUR}, 3')
    elif OPT['rot']:
        a(f's_lshl_b32 s{S_CUR}, s{S_T1}, 1')
        a(f's_add_u32 s{S_CUR}, s{S_CUR}, s{S_BP}')
        a(f's_lshl_b32 s{S_CUR}, s{S_CUR}, 1')
        a(f's_and_b32 s{S_CUR}, s{S_CUR}, 15')
    else:
        a(f's_mov_b32 s{S_CUR}, 0')
    a(f'v_lshrrev_b32 v{T4}, 3, v0')
    a(f'v_and_b32 v{T5}, 7, v0')
    a(f's_mul_i32 s{S_T3}, s{S_LI}, 3')
    for ii in range(3):
        a(f's_add_u32 s{S_T0}, s{S_T3}, {ii}')
        a(f's_and_b32 s{S_T1}, s{S_T0}, 1')
        a(f's_lshl_b32 s{S_T1}, s{S_T1}, 2')
        a(f'v_or_b32 v{T0}, s{S_T1}, v{V_G}')
        a(f'v_xor_b32 v{T0}, v{T0}, v{T5}')
        a(f'v_lshlrev_b32 v{T0}, 4, v{T0}')
        a(f's_lshl_b32 s{S_T0}, s{S_T0}, 14')
        if ii: a(f's_sub_u32 s{S_T0}, s{S_T0}, {ii*1024}')
        a(f'v_lshlrev_b32 v{T1}, 11, v{T4}')
        a(f'v_add3_u32 v{V_A[ii]}, v{T0}, v{T1}, s{S_T0}')
    for hh in range(2):
        a(f'v_or_b32 v{T2+hh}, {hh<<2}, v{V_G}')
        a(f'v_lshlrev_b32 v{T2+hh}, 1, v{T2+hh}')
        a(f'v_xor_b32 v{T2+hh}, v{T2+hh}, v{V_M}')
        a(f'v_lshlrev_b32 v{T2+hh}, 4, v{T2+hh}')
    a(f'v_lshlrev_b32 v{T1}, 13, v{V_G}')
    for ii in range(4):
        a(f's_lshl_b32 s{S_T0}, s{S_LI}, 17')
        if ii: a(f's_add_u32 s{S_T0}, s{S_T0}, {ii*4*8192-ii*1024}')
        a(f'v_add3_u32 v{V_B[ii]}, v{T2+(ii>>1)}, v{T1}, s{S_T0}')
    a(f's_mul_i32 s{S_M0A}, s{S_LI}, 3072')
    a(f's_lshl_b32 s{S_M0B}, s{S_LI}, 12')
    a(f's_add_u32 s{S_M0B}, s{S_M0B}, 12288')
    a(f's_lshl_b32 s{S_AO}, s{S_CUR}, 7')
    a(f's_lshl_b32 s{S_BO}, s{S_CUR}, 19')
    a('s_waitcnt lgkmcnt(0)')
    a(f's_mul_i32 s{S_T0}, s{S_BP}, 196608')
    srd(a,R_X,S_XP,SZ_X,S_T0)
    a(f's_lshl_b32 s{S_T0}, s{S_HEAD}, 8')
    srd(a,R_WQ,S_WQP,SZ_W,S_T0)
    def issueA(rs,va,st,tag,aux=''):
        slot=st%4
        if OPT['noa'] and st>=4: return
        if rs==R_X and OPT['xnt']: aux=' nt'
        if rs==R_X and OPT['cnt'] in (1,3) and st<4: aux=' nt'
        a(f's_add_u32 m0, s{S_M0A}, {slot*STAGE}')
        for ii in range(3):
            off=f' offset:{ii*1024}' if ii else ''
            vm.issue(f'buffer_load_dwordx4 v{va[ii]}, s[{rs}:{rs+3}], s{S_AO} offen{off}{aux} lds',tag)
    def issueB(rs,vb,st,tag,aux=''):
        slot=st%4
        if OPT['nob'] and isinstance(tag,int) and st>=4:
            vm.note(tag); vm.q.pop();
            return
        if rs==R_WQ and OPT['wqnt']: aux=' nt'
        if rs==R_WQ and OPT['cnt'] in (1,2) and st<2: aux=' nt'
        if rs==R_WO and OPT['wont']: aux=' nt'
        a(f's_add_u32 m0, s{S_M0B}, {slot*STAGE}')
        for ii in range(4):
            off=f' offset:{ii*1024}' if ii else ''
            vm.issue(f'buffer_load_dwordx4 v{vb[ii]}, s[{rs}:{rs+3}], s{S_BO} offen{off}{aux} lds',tag)
    def adv1():
        a(f's_add_u32 s{S_AO}, s{S_AO}, 128')
        a(f's_and_b32 s{S_AO}, s{S_AO}, 2047')
        a(f's_lshl_b32 s{S_BO}, s{S_AO}, 12')
    def tlbtouch():
        a(f's_cmp_eq_u32 s{S_LI}, 1')
        a('s_cbranch_scc1 L_t1')
        a(f's_cmp_eq_u32 s{S_LI}, 2')
        a('s_cbranch_scc1 L_t2')
        srd(a,R_KV,S_WOP,SZ_W,None); srd(a,R_WO,S_OUTP,SZ_OUT,None)
        a(f's_mov_b32 s{S_T0}, {131072-1792}'); a(f's_mov_b32 s{S_T1}, {24576-256}'); a(f's_mov_b32 s{S_T2}, 0')
        a('s_branch L_td')
        a.label('L_t1')
        srd(a,R_KV,S_WSP,SZ_WS,None); srd(a,R_WO,S_WSP,SZ_WS,None)
        a(f's_mov_b32 s{S_T0}, {172032+256}'); a(f's_mov_b32 s{S_T1}, {172032+256}'); a(f's_mov_b32 s{S_T2}, {11010048}')
        a('s_branch L_td')
        a.label('L_t2')
        srd(a,R_KV,S_KP,SZ_KV,None); srd(a,R_WO,S_VP,SZ_KV,None)
        a(f's_mov_b32 s{S_T0}, {98304-256}'); a(f's_mov_b32 s{S_T1}, {98304-256}'); a(f's_mov_b32 s{S_T2}, 0')
        a.label('L_td')
        a(f'v_mul_lo_u32 v{V_JUNK}, v0, s{S_T0}')
        a(f'v_mul_lo_u32 v{V_JUNK+1}, v0, s{S_T1}')
        vm.issue(f'buffer_load_dword v{V_JUNK+2}, v{V_JUNK}, s[{R_KV}:{R_KV+3}], 0 offen','t')
        vm.issue(f'buffer_load_dword v{V_JUNK+3}, v{V_JUNK+1}, s[{R_WO}:{R_WO+3}], s{S_T2} offen','t')
    fstamp(a,'start')
    NPRO=OPT['npro']
    if OPT['tlb']==1: tlbtouch()
    for st in range(NPRO):
        issueA(R_X,V_A,st,st); issueB(R_WQ,V_B,st,st); adv1()
        fstamp(a,f'pro{st}')
        if OPT['tlb']==2 and st==0: tlbtouch()
    if OPT['tlb']==3: tlbtouch()
    stamp(a,1)
    late_srds(a)
    a(f'v_lshlrev_b32 v{T1}, 11, v{V_G}')
    a(f's_lshr_b32 s{S_T1}, s{S_LI}, 1')
    a(f's_lshl_b32 s{S_T1}, s{S_T1}, 5')
    a(f's_and_b32 s{S_T2}, s{S_LI}, 1')
    a(f's_lshl_b32 s{S_T2}, s{S_T2}, 3')
    a(f's_add_u32 s{S_T1}, s{S_T1}, s{S_T2}')
    a(f's_lshl_b32 s{S_T1}, s{S_T1}, 11')
    for ii in range(4):
        c=(16*(ii&1)+4*(ii>>1))*2048-ii*1024
        a(f's_add_u32 s{S_T0}, s{S_T1}, {c}' if c>=0 else f's_sub_u32 s{S_T0}, s{S_T1}, {-c}')
        a(f'v_add3_u32 v{V_B2[ii]}, v{T2+(ii>>1)}, v{T1}, s{S_T0}')
    vm.wait(0)
    fstamp(a,'w0')
    a('s_barrier')
    stamp(a,2)
    fstamp(a,'B-1')
    for st in range(NPRO,4):
        issueA(R_X,V_A,st,st); issueB(R_WQ,V_B,st,st); adv1()
    def wo_off(st):
        stage_of(a,st,S_T0,S_T1)
        a(f's_lshl_b32 s{S_BO}, s{S_T0}, 17')
        return S_T0
    for st in range(16):
        if st<15: vm.wait(st+1)
        fstamp(a,f'w{st+1}')
        a('s_barrier')
        fstamp(a,f'B{st}')
        if st<12:
            issueA(R_X,V_A,st+4,st+4); issueB(R_WQ,V_B,st+4,st+4); adv1()
        if st==OPT['jst'] and not OPT['nojunk']:
            a(f's_lshl_b32 s{S_T0}, s{S_KS}, 21')
            a(f's_and_b32 s{S_T1}, s{S_NT}, 4')
            a(f's_lshl_b32 s{S_T1}, s{S_T1}, 8')
            a(f's_add_u32 s{S_T0}, s{S_T0}, s{S_T1}')
            srd(a,R_KV,S_WOP,SZ_W,S_T0)
            a(f's_lshl_b32 s{S_T0}, s{S_BP}, 2')
            a(f's_and_b32 s{S_T1}, s{S_NT}, 3')
            a(f's_add_u32 s{S_T0}, s{S_T0}, s{S_T1}')
            a(f's_lshl_b32 s{S_T0}, s{S_T0}, 2')
            a(f's_add_u32 s{S_T0}, s{S_T0}, s{S_LI}')
            a(f's_lshl_b32 s{S_T0}, s{S_T0}, 14')
            a(f'v_lshlrev_b32 v{T0}, 4, v0')
            for k in range(8):
                vm.issue(f'buffer_load_dwordx4 v[{V_JUNK}:{V_JUNK+3}], v{T0}, s[{R_KV}:{R_KV+3}], s{S_T0} offen'+['',' nt',' sc1',' sc0 sc1',' sc0',' sc1 nt',' sc0 sc1 nt',' sc0 nt'][OPT['jnt']],'j')
                if k<7: a(f's_add_u32 s{S_T0}, s{S_T0}, 2048')
        if st==12:
            a(f'v_mov_b32 v{T0}, 0')
            vm.issue(f'buffer_load_dwordx2 v[{V_N}:{V_N+1}], v{T0}, s[{R_DBG}:{R_DBG+3}], 0 offen sc1','n')
        if st>=12 and OPT['bpmode']==0:
            wo_off(st-12)
            issueB(R_WO,V_B2,st-12,('p',st-12))
    stamp(a,3)
    nonce_get(a,'l',lambda: vm.wait('n'))
    fstamp(a,'nonce')
    a('s_branch L_bq')
    ldq=list(vm.q)
    a.label('L_cons1')
    a.c('==== consumer P1')
    if OPT['prio']: a(f's_setprio {OPT["prio"]}')
    a(f's_and_b32 s{S_WM}, s{S_W}, 1')
    a(f's_lshr_b32 s{S_WN}, s{S_W}, 1')
    a(f'v_lshrrev_b32 v{T0}, 1, v{V_M}')
    a(f'v_xor_b32 v{T0}, v{T0}, v{V_G}')
    a(f'v_lshlrev_b32 v{T0}, 4, v{T0}')
    a(f's_mul_i32 s{S_T0}, s{S_WM}, 6144')
    a(f'v_lshl_add_u32 v{T1}, v{V_M}, 7, s{S_T0}')
    a(f'v_add_u32 v12, v{T0}, v{T1}')
    a('v_xor_b32 v13, 64, v12')
    a(f'v_add_u32 v14, {2*STAGE}, v12')
    a(f'v_add_u32 v15, {2*STAGE}, v13')
    baddr_calc(a,False)
    a(f's_cmp_ge_u32 s{S_W}, 2')
    a('s_cbranch_scc1 L_kvV')
    for i in range(4):
        a(f'v_or_b32 v{T0}, {i<<2}, v{V_G}')
        a(f'v_xor_b32 v{T0}, v{T0}, v{V_M}')
        a(f'v_lshlrev_b32 v{T0}, 4, v{T0}')
        a(f'v_lshl_add_u32 v{V_KV[i]}, v{V_G}, 8, v{T0}')
    a('s_branch L_kvdone')
    a.label('L_kvV')
    for i in range(4):
        a(f'v_or_b32 v{T0}, {(i&1)<<2}, v{V_G}')
        a(f'v_lshlrev_b32 v{T0}, 1, v{T0}')
        a(f'v_xor_b32 v{T0}, v{T0}, v{V_M}')
        a(f'v_lshlrev_b32 v{T0}, 4, v{T0}')
        a(f'v_lshl_add_u32 v{V_KV[i]}, v{V_G}, 8, v{T0}')
    a.label('L_kvdone')
    a(f's_mul_i32 s{S_KVM}, s{S_W}, 12288')
    a(f's_add_u32 s{S_KVM}, s{S_KVM}, {KVBASE}')
    a('s_waitcnt lgkmcnt(0)')
    a(f's_lshl_b32 s{S_T0}, s{S_BP}, 1')
    a(f's_add_u32 s{S_T0}, s{S_T0}, s{S_WM}')
    a(f's_lshl_b32 s{S_T0}, s{S_T0}, 5')
    a(f's_add_u32 s{S_T0}, s{S_T0}, s{S_HEAD}')
    a(f's_mul_i32 s{S_T0}, s{S_T0}, 12288')
    a(f's_cmp_ge_u32 s{S_W}, 2')
    a(f's_cselect_b32 s{S_T1}, s{S_VP}, s{S_KP}')
    a(f's_cselect_b32 s{S_T2}, s{S_VP+1}, s{S_KP+1}')
    srd(a,R_KV,S_T1,SZ_KV,S_T0)
    late_srds(a)
    if OPT['kvmode']==4:
        a(f's_and_b32 s{S_T0}, s{S_HEAD}, 3')
        if OPT['kvcl']==0: a(f's_add_u32 s{S_T0}, s{S_T0}, s{S_BP}')
        if OPT['kvcl']==1: a(f's_mov_b32 s{S_T0}, s{S_BP}')
        a(f's_and_b32 s{S_T0}, s{S_T0}, 3')
        a(f's_mul_i32 s{S_T0}, s{S_T0}, {OPT["kvsp"]}')
        a(f's_add_u32 s{S_LI}, s{S_T0}, {OPT["kvst"]}')
    if OPT['kvmode']==6:
        a(f's_and_b32 s{S_T0}, s{S_HEAD}, 3')
        if OPT['kvc8']==0:
            a(f's_lshl_b32 s{S_T0}, s{S_T0}, 1')
            a(f's_add_u32 s{S_T0}, s{S_T0}, s{S_BP}')
        elif OPT['kvc8']==1:
            a(f's_mov_b32 s{S_T0}, s{S_BP}')
        elif OPT['kvc8']==2:
            a(f's_lshl_b32 s{S_T1}, s{S_BP}, 1')
            a(f's_add_u32 s{S_T0}, s{S_T0}, s{S_T1}')
        elif OPT['kvc8']==3:
            a(f's_and_b32 s{S_T1}, s{S_BP}, 1')
            a(f's_lshl_b32 s{S_T1}, s{S_T1}, 2')
            a(f's_add_u32 s{S_T0}, s{S_T0}, s{S_T1}')
            a(f's_lshr_b32 s{S_T1}, s{S_HEAD}, 2')
            a(f's_add_u32 s{S_T0}, s{S_T0}, s{S_T1}')
        a(f's_and_b32 s{S_T0}, s{S_T0}, 7')
        a(f's_lshl_b32 s{S_T0}, s{S_T0}, 2')
        a(f's_lshr_b32 s{S_T0}, {hex(OPT["kvtab"])}, s{S_T0}')
        a(f's_and_b32 s{S_LI}, s{S_T0}, 15')
    if OPT['kvmode']==5:
        a(f's_and_b32 s{S_T0}, s{S_HEAD}, 3')
        a(f's_lshl_b32 s{S_T0}, s{S_T0}, 1')
        a(f's_add_u32 s{S_T0}, s{S_T0}, s{S_BP}')
        a(f's_and_b32 s{S_T0}, s{S_T0}, 7')
        a(f's_add_u32 s{S_LI}, s{S_T0}, {OPT["kvst"]}')
    a(f's_or_b32 s{S_T0}, s2, s{S_W}')
    a(f's_cmp_lg_u32 s{S_T0}, 0')
    a('s_cbranch_scc1 L_nonon')
    a(f's_memrealtime s[{S_N}:{S_N+1}]')
    a('s_waitcnt lgkmcnt(0)')
    a(f's_or_b32 s{S_N+1}, s{S_N+1}, 0x80000000')
    a(f'v_mov_b32 v{V_N}, s{S_N}')
    a(f'v_mov_b32 v{V_N+1}, s{S_N+1}')
    a(f'v_mov_b32 v{T0}, 0')
    a(f'buffer_store_dwordx2 v[{V_N}:{V_N+1}], v{T0}, s[{R_DBG}:{R_DBG+3}], 0 offen sc1')
    a.label('L_nonon')
    kvnt=['',' nt',' sc1',' sc0 sc1',' sc0',' sc1 nt',' sc0 sc1 nt',' sc0 nt'][OPT['kvnt']]
    def kvpair(p):
        grp=p>>1; L=[]
        if OPT['nokv']: return L
        L.append(f's_add_u32 m0, s{S_KVM}, {grp*4096}')
        L.append(f's_mov_b32 s{S_T3}, {grp*4096}')
        for i in (2*(p&1),2*(p&1)+1):
            off=f' offset:{i*1024}' if i else ''
            L.append(f'buffer_load_dwordx4 v{V_KV[i]}, s[{R_KV}:{R_KV+3}], s{S_T3} offen{off}{kvnt} lds')
        return L
    if OPT['kvmode']==1:
        for p in range(6):
            for x in kvpair(p): a(x)
    stamp(a,1)
    a('s_barrier')
    stamp(a,2)
    if OPT['stamps']: a('s_waitcnt lgkmcnt(0)')
    ex={}
    k0=OPT['kvst']
    if OPT['kvmode']==0:
        for p in range(6): ex[k0+p]=kvpair(p)
        nst=k0+6
    elif OPT['kvmode']==2:
        ex[k0]=sum((kvpair(p) for p in range(6)),[])
        nst=max(k0+1,6)
    elif OPT['kvmode']==3:
        ex[k0]=sum((kvpair(p) for p in range(3)),[])
        ex[k0+1]=sum((kvpair(p) for p in range(3,6)),[])
        nst=max(k0+2,6)
    elif OPT['kvmode']==4:
        def burst(st):
            def f():
                a(f's_cmp_lg_u32 s{S_LI}, {st}')
                a(f's_cbranch_scc1 L_kvs{st}')
                for p in range(6):
                    for x in kvpair(p): a(x)
                a.label(f'L_kvs{st}')
            return f
        for c in range(4): ex[k0+OPT['kvsp']*c]=[burst(k0+OPT['kvsp']*c)]
        nst=k0+OPT['kvsp']*3+1
    elif OPT['kvmode']==6:
        def burst(st):
            def f():
                a(f's_cmp_lg_u32 s{S_LI}, {st}')
                a(f's_cbranch_scc1 L_kvs{st}')
                for p in range(6):
                    for x in kvpair(p): a(x)
                a.label(f'L_kvs{st}')
            return f
        sts=sorted(set((OPT['kvtab']>>(4*c))&15 for c in range(8)))
        for c in sts: ex[c]=[burst(c)]
        nst=max(sts)+1
    elif OPT['kvmode']==5:
        def burst(st):
            def f():
                a(f's_cmp_lg_u32 s{S_LI}, {st}')
                a(f's_cbranch_scc1 L_kvs{st}')
                for p in range(6):
                    for x in kvpair(p): a(x)
                a.label(f'L_kvs{st}')
            return f
        for c in range(8): ex[k0+c]=[burst(k0+c)]
        nst=k0+8
    else:
        nst=6
    nst=min(nst,15)
    ex.setdefault(nst,[])
    ex[nst]+= [f'v_mov_b32 v{T0}, 0', f'buffer_load_dwordx2 v[{V_N}:{V_N+1}], v{T0}, s[{R_DBG}:{R_DBG+3}], 0 offen sc1']
    consumer_loop(a, extra2=ex)
    stamp(a,3)
    a.c('Q to LDS')
    a(f's_mul_i32 s{S_T0}, s{S_WM}, {STAGE}')
    a(f's_lshl_b32 s{S_T1}, s{S_WN}, 11')
    a(f's_add_u32 s{S_T0}, s{S_T0}, s{S_T1}')
    a(f's_add_u32 s{S_T0}, s{S_T0}, {2*STAGE}')
    a(f'v_lshrrev_b32 v1, 1, v{V_G}')
    a('v_lshlrev_b32 v1, 8, v1')
    a(f'v_and_b32 v2, 1, v{V_G}')
    a('v_lshl_add_u32 v1, v2, 3, v1')
    a(f'v_lshl_add_u32 v1, v{V_M}, 4, v1')
    a(f'v_add_u32 v1, s{S_T0}, v1')
    for t in range(4):
        for mt in range(3):
            ac=ACC+(t*3+mt)*4
            r=FA+((t*3+mt)%6)*2
            a(f'v_cvt_pk_bf16_f32 v{r}, v{ac}, v{ac+1}')
            a(f'v_cvt_pk_bf16_f32 v{r+1}, v{ac+2}, v{ac+3}')
            a(f'ds_write_b64 v1, v[{r}:{r+1}] offset:{mt*4096+(t>>1)*1024+(t&1)*512}')
    nonce_get(a,'c',lambda: a('s_waitcnt vmcnt(0)'))
    a('s_waitcnt lgkmcnt(0)')
    a.label('L_bq')
    a('s_barrier')
    stamp(a,4)
    a('s_waitcnt lgkmcnt(0)')
    a(f's_cmp_ge_u32 s{S_W}, 6')
    a('s_cbranch_scc1 L_pref')
    AV=240
    a(f's_mov_b32 s{S_L2E}, {LOG2E}')
    a(f's_cmp_ge_u32 s{S_W}, 3')
    a(f's_cselect_b32 s{S_BB}, 1, 0')
    a(f's_mul_i32 s{S_MT}, s{S_BB}, 3')
    a(f's_sub_u32 s{S_MT}, s{S_W}, s{S_MT}')
    a(f's_mul_i32 s{S_T0}, s{S_BB}, {STAGE}')
    a(f's_lshl_b32 s{S_T1}, s{S_MT}, 12')
    a(f's_add_u32 s{S_T0}, s{S_T0}, s{S_T1}')
    a(f's_add_u32 s{S_T0}, s{S_T0}, {2*STAGE}')
    vQ=AV; vK=AV+1; vV=AV+5
    a(f'v_lshl_add_u32 v{vQ}, v0, 4, s{S_T0}')
    a(f's_mul_i32 s{S_T0}, s{S_BB}, 12288')
    a(f's_add_u32 s{S_T0}, s{S_T0}, {KVBASE}')
    a(f'v_xor_b32 v{vK}, v{V_G}, v{V_M}')
    a(f'v_lshlrev_b32 v{vK}, 4, v{vK}')
    a(f'v_lshl_add_u32 v{vK}, v{V_M}, 8, v{vK}')
    a(f'v_add_u32 v{vK}, s{S_T0}, v{vK}')
    a(f'v_xor_b32 v{vK+1}, 64, v{vK}')
    a(f'v_xor_b32 v{vK+2}, 0x80, v{vK}')
    a(f'v_xor_b32 v{vK+3}, 0xc0, v{vK}')
    QF=80; KF=96; S=32; X=44; TP=56; PP=68; VF32=192; VF16=224; OA=144; OP=176
    for U in range(4): a(f'ds_read_b128 v[{QF+4*U}:{QF+4*U+3}], v{vQ} offset:{U*1024}')
    for t in range(2):
        for U in range(4): a(f'ds_read_b128 v[{KF+(t*4+U)*4}:{KF+(t*4+U)*4+3}], v{vK+U} offset:{t*4096}')
    a(f'v_lshrrev_b32 v{T0}, 2, v{V_M}')
    a(f'v_and_b32 v{T1}, 3, v0')
    a(f'v_lshl_add_u32 v{T2}, v{V_G}, 2, v{T0}')
    a(f'v_lshlrev_b32 v{T2}, 8, v{T2}')
    a(f'v_and_b32 v{T3}, 1, v{T1}')
    a(f'v_lshl_add_u32 v{T2}, v{T3}, 3, v{T2}')
    a(f'v_and_b32 v{T3}, 1, v{V_G}')
    a(f'v_lshlrev_b32 v{T3}, 3, v{T3}')
    a(f'v_lshl_add_u32 v{T3}, v{T0}, 1, v{T3}')
    a(f'v_lshrrev_b32 v{T1}, 1, v{T1}')
    a(f'v_xor_b32 v{T1}, v{T1}, v{T3}')
    a(f'v_lshl_add_u32 v{T2}, v{T1}, 4, v{T2}')
    a(f's_add_u32 s{S_T0}, s{S_T0}, 24576')
    a(f'v_add_u32 v{vV}, s{S_T0}, v{T2}')
    for t in range(1,8): a(f'v_xor_b32 v{vV+t}, {32*t}, v{vV}')
    a('s_waitcnt lgkmcnt(4)')
    for U in range(4):
        a(f'v_mfma_f32_16x16x32_bf16 v[{S}:{S+3}], v[{KF+U*4}:{KF+U*4+3}], v[{QF+4*U}:{QF+4*U+3}], '+('0' if U==0 else f'v[{S}:{S+3}]'))
    for U in range(4): a(f'ds_read_b128 v[{KF+(8+U)*4}:{KF+(8+U)*4+3}], v{vK+U} offset:8192')
    a('s_waitcnt lgkmcnt(4)')
    for U in range(4):
        a(f'v_mfma_f32_16x16x32_bf16 v[{S+4}:{S+7}], v[{KF+(4+U)*4}:{KF+(4+U)*4+3}], v[{QF+4*U}:{QF+4*U+3}], '+('0' if U==0 else f'v[{S+4}:{S+7}]'))
    a('s_waitcnt lgkmcnt(0)')
    for U in range(4):
        a(f'v_mfma_f32_16x16x32_bf16 v[{S+8}:{S+11}], v[{KF+(8+U)*4}:{KF+(8+U)*4+3}], v[{QF+4*U}:{QF+4*U+3}], '+('0' if U==0 else f'v[{S+8}:{S+11}]'))
    def vreads(ts):
        for t in ts:
            a(f'ds_read_b64_tr_b16 v[{VF32+4*t}:{VF32+4*t+1}], v{vV+t}')
            a(f'ds_read_b64_tr_b16 v[{VF32+4*t+2}:{VF32+4*t+3}], v{vV+t} offset:4096')
            a(f'ds_read_b64_tr_b16 v[{VF16+2*t}:{VF16+2*t+1}], v{vV+t} offset:8192')
    vreads(range(0,4))
    for p in range(6): a(f'v_cvt_pk_bf16_f32 v{TP+p}, v{S+2*p}, v{S+2*p+1}')
    for p in range(6):
        a(f'v_lshlrev_b32 v{X+2*p}, 16, v{TP+p}')
        a(f'v_and_b32 v{X+2*p+1}, 0xffff0000, v{TP+p}')
    for i in range(12): a(f'v_mul_f32 v{X+i}, {SCALE}, v{X+i}')
    for p in range(6): a(f'v_cvt_pk_bf16_f32 v{TP+p}, v{X+2*p}, v{X+2*p+1}')
    for p in range(6):
        a(f'v_lshlrev_b32 v{X+2*p}, 16, v{TP+p}')
        a(f'v_and_b32 v{X+2*p+1}, 0xffff0000, v{TP+p}')
    a('s_waitcnt lgkmcnt(0)')
    vreads(range(4,8))
    M=62; M2=63
    a(f'v_max3_f32 v{M}, v{X}, v{X+1}, v{X+2}')
    for i in range(3,11,2): a(f'v_max3_f32 v{M}, v{M}, v{X+i}, v{X+i+1}')
    a(f'v_max_f32 v{M}, v{M}, v{X+11}')
    for sw in ('v_permlane32_swap_b32','v_permlane16_swap_b32'):
        a(f'v_mov_b32 v{M2}, v{M}')
        a(f'{sw} v{M}, v{M2}')
        a(f'v_max_f32 v{M}, v{M}, v{M2}')
    a(f'v_mul_f32 v{M}, s{S_L2E}, v{M}')
    for i in range(12): a(f'v_fma_f32 v{X+i}, v{X+i}, s{S_L2E}, -v{M}')
    for i in range(12): a(f'v_exp_f32 v{X+i}, v{X+i}')
    SM=64
    a(f'v_add_f32 v{SM}, v{X}, v{X+1}')
    for i in range(2,12): a(f'v_add_f32 v{SM}, v{SM}, v{X+i}')
    for sw in ('v_permlane32_swap_b32','v_permlane16_swap_b32'):
        a(f'v_mov_b32 v{M2}, v{SM}')
        a(f'{sw} v{SM}, v{M2}')
        a(f'v_add_f32 v{SM}, v{SM}, v{M2}')
    a(f'v_rcp_f32 v{SM}, v{SM}')
    for i in range(12): a(f'v_mul_f32 v{X+i}, v{X+i}, v{SM}')
    for p in range(6): a(f'v_cvt_pk_bf16_f32 v{PP+p}, v{X+2*p}, v{X+2*p+1}')
    a('s_waitcnt lgkmcnt(0)')
    for t in range(8):
        a(f'v_mfma_f32_16x16x32_bf16 v[{OA+4*t}:{OA+4*t+3}], v[{VF32+4*t}:{VF32+4*t+3}], v[{PP}:{PP+3}], 0')
    for t in range(8):
        a(f'v_mfma_f32_16x16x16_bf16 v[{OA+4*t}:{OA+4*t+3}], v[{VF16+2*t}:{VF16+2*t+1}], v[{PP+4}:{PP+5}], v[{OA+4*t}:{OA+4*t+3}]')
    a(f's_lshl_b32 s{S_T0}, s{S_BP}, 5')
    a(f's_add_u32 s{S_T0}, s{S_T0}, s{S_HEAD}')
    a(f's_mul_i32 s{S_T0}, s{S_T0}, 24576')
    a(f's_lshl_b32 s{S_T1}, s{S_W}, 11')
    a(f's_add_u32 s{S_T0}, s{S_T0}, s{S_T1}')
    a(f's_add_u32 s{S_T2}, s{S_T0}, 12288')
    a(f's_lshl_b32 s{S_KVM}, s{S_KS}, 3')
    a(f's_add_u32 s{S_KVM}, s{S_KVM}, s{S_BP}')
    a(f's_lshl_b32 s{S_KVM}, s{S_KVM}, 9')
    a(f's_lshl_b32 s{S_T3}, s{S_NT}, 6')
    a(f's_add_u32 s{S_KVM}, s{S_KVM}, s{S_T3}')
    a(f's_lshl_b32 s{S_T3}, s{S_W}, 3')
    a(f's_add_u32 s{S_KVM}, s{S_KVM}, s{S_T3}')
    a(f's_add_u32 s{S_KVM}, s{S_KVM}, {WS_FO}')
    a(f'v_lshlrev_b32 v{vQ}, 4, v0')
    a(f'v_add_u32 v{vK}, s{S_T1}, v{vQ}')
    a(f'v_add_u32 v{vK+1}, {STAGE}, v{vK}')
    a(f'v_mov_b32 v{T5}, 0')
    a(f'v_mov_b32 v{V_N}, s{S_N}')
    a(f'v_mov_b32 v{V_N+1}, s{S_N+1}')
    for u in range(4):
        for h2 in range(2):
            t=2*u+h2
            a(f'v_cvt_pk_bf16_f32 v{OP+4*u+2*h2}, v{OA+4*t}, v{OA+4*t+1}')
            a(f'v_cvt_pk_bf16_f32 v{OP+4*u+2*h2+1}, v{OA+4*t+2}, v{OA+4*t+3}')
        off=f' offset:{(u&1)*1024}' if u&1 else ''
        a(f'buffer_store_dwordx4 v[{OP+4*u}:{OP+4*u+3}], v{vQ}, s[{R_WS}:{R_WS+3}], s{S_T0 if u<2 else S_T2} offen{off} sc1')
        a(f'ds_write_b128 v{vK+(u>>1)}, v[{OP+4*u}:{OP+4*u+3}]{off}')
    def oflag():
        a('s_waitcnt vmcnt(0)')
        a('s_mov_b64 exec, 1')
        a(f'buffer_store_dwordx2 v[{V_N}:{V_N+1}], v{T5}, s[{R_WS}:{R_WS+3}], s{S_KVM} offen sc1')
        a('s_mov_b64 exec, -1')
    if OPT['ofl']==0: oflag()
    stamp(a,5)
    a(f's_cmp_ge_u32 s{S_W}, 4')
    a('s_cbranch_scc1 L_ld45')
    a.c('==== consumer P2')
    a(f's_mul_i32 s{S_T0}, s{S_WM}, 6144')
    a(f'v_lshl_add_u32 v12, v0, 4, s{S_T0}')
    a('v_add_u32 v13, 1024, v12')
    a(f'v_add_u32 v14, {2*STAGE}, v12')
    a(f'v_add_u32 v15, {2*STAGE}, v13')
    baddr_calc(a,True)
    S_PD=[S_AO,S_BO,S_M0A]; S_IN=S_M0B; S_GI=S_MT; S_OB=S_CUR
    PMSG=1792 if OPT['pq'] else 3072
    a(f's_lshl_b32 s{S_T3}, s{S_NT}, 3')
    a(f's_add_u32 s{S_T3}, s{S_T3}, s{S_BP}')
    a(f's_lshl_b32 s{S_T3}, s{S_T3}, 2')
    for t in range(1,4):
        a(f's_add_u32 s{S_T0}, s{S_KS}, {t}')
        a(f's_and_b32 s{S_T0}, s{S_T0}, 3')
        a(f's_add_u32 s{S_T0}, s{S_T0}, s{S_T3}')
        a(f's_lshl_b32 s{S_T0}, s{S_T0}, 2')
        a(f's_add_u32 s{S_T0}, s{S_T0}, s{S_W}')
        a(f's_mul_i32 s{S_T0}, s{S_T0}, {3*PMSG}')
        a(f's_add_u32 s{S_PD[t-1]}, s{S_T0}, {WS_P+(t-1)*PMSG}')
    VGR=2; VGI=3; VO=4; VD=1; VD3=5
    a(f'v_mul_u32_u24 v{VD3}, 12, v0')
    a(f'v_min_u32 v{T0}, 2, v0')
    a(f'v_add_u32 v{T1}, s{S_KS}, v{T0}')
    a(f'v_add_u32 v{T1}, 1, v{T1}')
    a(f'v_and_b32 v{T1}, 3, v{T1}')
    a(f'v_add_u32 v{T1}, s{S_T3}, v{T1}')
    a(f'v_lshlrev_b32 v{T1}, 2, v{T1}')
    a(f'v_add_u32 v{T1}, s{S_W}, v{T1}')
    a(f'v_lshlrev_b32 v{T1}, 5, v{T1}')
    a(f'v_lshl_add_u32 v{VGR}, v{T0}, 3, v{T1}')
    a(f'v_lshlrev_b32 v{VGI}, 3, v{T0}')
    a(f'v_lshlrev_b32 v{VD}, 4, v0')
    a(f's_add_u32 s{S_T1}, s{S_T3}, s{S_KS}')
    a(f's_lshl_b32 s{S_T1}, s{S_T1}, 2')
    a(f's_add_u32 s{S_T1}, s{S_T1}, s{S_W}')
    a(f's_lshl_b32 s{S_GI}, s{S_T1}, 5')
    a(f's_add_u32 s{S_GI}, s{S_GI}, {WS_FP}')
    a(f's_mul_i32 s{S_T1}, s{S_T1}, {3*PMSG}')
    a(f's_add_u32 s{S_IN}, s{S_T1}, {WS_P}')
    a(f's_mul_i32 s{S_T0}, s{S_BP}, 96')
    a(f's_mul_i32 s{S_T1}, s{S_WM}, 48')
    a(f's_add_u32 s{S_T0}, s{S_T0}, s{S_T1}')
    a(f's_lshl_b32 s{S_T0}, s{S_T0}, 11')
    a(f's_lshl_b32 s{S_T1}, s{S_NT}, 8')
    a(f's_add_u32 s{S_T0}, s{S_T0}, s{S_T1}')
    a(f's_lshl_b32 s{S_T1}, s{S_WN}, 7')
    a(f's_add_u32 s{S_T0}, s{S_T0}, s{S_T1}')
    a(f's_lshl_b32 s{S_T1}, s{S_KS}, 5')
    a(f's_add_u32 s{S_OB}, s{S_T0}, s{S_T1}')
    a(f'v_lshlrev_b32 v{VO}, 11, v{V_M}')
    a(f'v_lshl_add_u32 v{VO}, v{V_G}, 3, v{VO}')
    a('s_waitcnt lgkmcnt(0)')
    a('s_barrier')
    stamp(a,6)
    if OPT['ofl']==1: oflag()
    stamp(a,7)
    if OPT['stamps']: a('s_waitcnt lgkmcnt(0)')
    consumer_loop(a)
    stamp(a,8)
    a.c('partials')
    CSV=[V_CS,V_CS2,T0]
    if OPT['pq']:
        QB=[80,88,96]; RC=[104,106,108]
        for grp in range(6):
            for t in range(1,4):
                ac=ACC+t*12; m=QB[t-1]+6
                if grp==0: a(f'v_max3_f32 v{m}, |v{ac}|, |v{ac+1}|, |v{ac+2}|')
                elif grp<5: a(f'v_max3_f32 v{m}, v{m}, |v{ac+2*grp+1}|, |v{ac+2*grp+2}|')
                else: a(f'v_max3_f32 v{m}, v{m}, |v{ac+11}|, s{S_T2}' if False else f'v_max_f32_e64 v{m}, v{m}, |v{ac+11}|')
        for t in range(1,4): a(f'v_max_f32 v{QB[t-1]+6}, 0x0d800000, v{QB[t-1]+6}')
        for t in range(1,4): a(f'v_rcp_f32 v{RC[t-1]}, v{QB[t-1]+6}')
        for t in range(1,4):
            ac=ACC+t*12; q=QB[t-1]; r=RC[t-1]
            for i in range(6): a(f'v_pk_mul_f32 v[{ac+2*i}:{ac+2*i+1}], v[{ac+2*i}:{ac+2*i+1}], v[{r}:{r+1}] op_sel_hi:[1,0]')
            for i in range(6): a(f'v_cvt_pknorm_i16_f32 v{q+i}, v{ac+2*i}, v{ac+2*i+1}')
            a(f'buffer_store_dwordx4 v[{q}:{q+3}], v{VD}, s[{R_WS}:{R_WS+3}], s{S_PD[t-1]} offen sc1')
            a(f'buffer_store_dwordx3 v[{q+4}:{q+6}], v{VD3}, s[{R_WS}:{R_WS+3}], s{S_PD[t-1]} offen offset:1024 sc1')
            csum(a,CSV[t-1],[q+e for e in range(7)],first=True)
    else:
      for t in range(1,4):
        for mt in range(OPT['pexp']):
            ac=ACC+(t*3+mt)*4
            off=f' offset:{mt*1024}' if mt else ''
            if OPT['rnd']:
                for e in range(4):
                    a(f'v_add_u32 v{ac+e}, {hex(1<<(OPT["rnd"]-1))}, v{ac+e}')
                    a(f'v_and_b32 v{ac+e}, {hex((0xffffffff<<OPT["rnd"])&0xffffffff)}, v{ac+e}')
            a(f'buffer_store_dwordx4 v[{ac}:{ac+3}], v{VD}, s[{R_WS}:{R_WS+3}], s{S_PD[t-1]} offen{off} sc1')
            csum(a,CSV[t-1],[ac+e for e in range(4)],first=(mt==0))
    vreduce(a,CSV,[T1,T2,T3])
    a(f'v_mov_b32 v{V_N+1}, s{S_N}')
    a('s_mov_b64 vcc, 2')
    a(f'v_cndmask_b32 v{V_N}, v{CSV[0]}, v{CSV[1]}, vcc')
    a('s_mov_b64 vcc, 4')
    a(f'v_cndmask_b32 v{V_N}, v{V_N}, v{CSV[2]}, vcc')
    a(f'v_mov_b32 v{T4}, 0')
    a('s_mov_b64 exec, 7')
    a(f's_mov_b32 s{S_T0}, {WS_FP}')
    a(f'buffer_store_dwordx2 v[{V_N}:{V_N+1}], v{VGR}, s[{R_WS}:{R_WS+3}], s{S_T0} offen sc1')
    stamp(a,9)
    G=142 if OPT['pq'] else 116
    a(f's_mov_b32 s{S_CNT}, {SPIN}')
    a.label('L_pp')
    a(f'buffer_load_dwordx2 v[{G}:{G+1}], v{VGI}, s[{R_WS}:{R_WS+3}], s{S_GI} offen sc1')
    a('s_waitcnt vmcnt(0)')
    a(f'v_cmp_ne_u32 vcc, s{S_N}, v{G+1}')
    if OPT['nochk']: a('s_branch L_ppd')
    a('s_cbranch_vccz L_ppd')
    a(f's_sub_u32 s{S_CNT}, s{S_CNT}, 1')
    a(f's_cmp_eq_u32 s{S_CNT}, 0')
    a('s_cbranch_scc0 L_pp')
    a.label('L_ppd')
    a(f'v_sub_u32 v{T4}, 0, v{G}')
    a('s_mov_b64 exec, -1')
    if OPT['stamps']==1:
        a('s_waitcnt lgkmcnt(0)')
        a(f's_sub_u32 s{S_ST+2}, {SPIN}, s{S_CNT}'); a(f's_mov_b32 s{S_ST+3}, 0')
    R=80
    a.label('L_pld')
    if OPT['pq']:
        R=112; SUM=160; F=144; SC=156
        for t in range(3):
            a(f's_add_u32 s{S_T0}, s{S_IN}, {t*PMSG}')
            r=R+t*8
            a(f'buffer_load_dwordx4 v[{r}:{r+3}], v{VD}, s[{R_WS}:{R_WS+3}], s{S_T0} offen sc1')
            a(f'buffer_load_dwordx3 v[{r+4}:{r+6}], v{VD3}, s[{R_WS}:{R_WS+3}], s{S_T0} offen offset:1024 sc1')
        a(f'v_mov_b32 v{V_CS}, v{T4}')
        for t in range(3):
            r=R+t*8
            a(f's_waitcnt vmcnt({4-2*t})')
            csum(a,V_CS,[r+i for i in range(7)],first=False)
            a(f'v_mul_f32 v{SC}, 0x38000100, v{r+6}')
            for i in range(6):
                a(f'v_cvt_f32_i32_sdwa v{F+2*i}, sext(v{r+i}) dst_sel:DWORD dst_unused:UNUSED_PAD src0_sel:WORD_0')
                a(f'v_cvt_f32_i32_sdwa v{F+2*i+1}, sext(v{r+i}) dst_sel:DWORD dst_unused:UNUSED_PAD src0_sel:WORD_1')
            for i in range(0,12,2):
                src=(ACC+i) if t==0 else (SUM+i)
                a(f'v_pk_fma_f32 v[{SUM+i}:{SUM+i+1}], v[{F+i}:{F+i+1}], v[{SC}:{SC+1}], v[{src}:{src+1}] op_sel_hi:[1,0,1]')
    else:
      for t in range(3):
        a(f's_add_u32 s{S_T0}, s{S_IN}, {t*3072}')
        for mt in range(OPT['pexp']):
            r=R+(t*3+mt)*4
            off=f' offset:{mt*1024}' if mt else ''
            a(f'buffer_load_dwordx4 v[{r}:{r+3}], v{VD}, s[{R_WS}:{R_WS+3}], s{S_T0} offen{off} sc1')
      SUM=120
      a(f'v_mov_b32 v{V_CS}, v{T4}')
      for t in range(3):
        a(f's_waitcnt vmcnt({(2-t)*OPT["pexp"]})')
        csum(a,V_CS,[R+t*12+i for i in range(4*OPT['pexp'])],first=False)
        for i in range(0,12,2):
            src=(ACC+i) if t==0 else (SUM+i)
            a(f'v_pk_add_f32 v[{SUM+i}:{SUM+i+1}], v[{src}:{src+1}], v[{R+t*12+i}:{R+t*12+i+1}]')
    vreduce(a,[V_CS],[T1])
    a(f'v_cmp_ne_u32 vcc, 0, v{V_CS}')
    if OPT['nochk']: a('s_branch L_pok')
    a('s_cbranch_vccz L_pok')
    if OPT['stamps']==1: a(f's_add_u32 s{S_ST+3}, s{S_ST+3}, 1')
    a(f's_sub_u32 s{S_CNT}, s{S_CNT}, 1')
    a(f's_cmp_gt_i32 s{S_CNT}, 0')
    a('s_cbranch_scc1 L_pld')
    a.label('L_pok')
    stamp(a,10)
    for mt in range(3):
        ac=SUM+mt*4
        a(f'v_cvt_pk_bf16_f32 v{ac}, v{ac}, v{ac+1}')
        a(f'v_cvt_pk_bf16_f32 v{ac+1}, v{ac+2}, v{ac+3}')
        a(f'buffer_store_dwordx2 v[{ac}:{ac+1}], v{VO}, s[{R_OUT}:{R_OUT+3}], s{S_OB} offen')
        if mt<2: a(f's_add_u32 s{S_OB}, s{S_OB}, {16*2048}')
    if OPT['stamps']==3:
        a('s_waitcnt vmcnt(0)')
        stamp(a,11)
        a('s_waitcnt lgkmcnt(0)')
        a(f's_xor_b32 s{S_T0}, s2, {OPT["dbgwg"]}')
        a(f's_or_b32 s{S_T0}, s{S_T0}, s{S_W}')
        a(f's_cmp_eq_u32 s{S_T0}, 0')
        a('s_cbranch_scc0 L_end')
        a('v_mov_b32 v2, 0')
        for j in range(NST):
            a(f's_sub_u32 s{S_T0}, s{S_ST+2*j}, s{S_N}')
            a(f'v_mov_b32 v4, s{S_T0}')
            a(f'buffer_store_dword v4, v2, s[{R_DBG}:{R_DBG+3}], 0 offen offset:{8+4*j}')
            a('s_nop 1')
    elif OPT['stamps']:
        a('s_waitcnt vmcnt(0)')
        stamp(a,11)
        a(f's_cmp_eq_u32 s{S_W}, 0')
        a('s_cbranch_scc0 L_end')
        stamp_flush(a,'c',0)
    a('s_endpgm')
    a.label('L_ld45')
    if OPT['bpmode']==0: a('s_waitcnt vmcnt(4) lgkmcnt(0)')
    else: a('s_waitcnt lgkmcnt(0)')
    a(f's_mov_b32 s{S_BB}, 1')
    a('s_branch L_ldbx')
    a.label('L_pref')
    fstamp(a,'pref0')
    def boff(st):
        stage_of(a,st,S_T0,S_T1)
        a(f's_lshl_b32 s{S_BO}, s{S_T0}, 17')
    if OPT['bpmode']==1:
        vm=VM(a)
        VB3=[16,17,18,19]
        for ii in range(4): a(f'v_subrev_u32 v{VB3[ii]}, 65536, v{V_B2[ii]}')
        for st in range(4):
            boff(st)
            issueB(R_WO,V_B2,st,('p',st))
            a(f's_sub_u32 s{S_M0B}, s{S_M0B}, 8192')
            issueB(R_WO,VB3,st,('p',st))
            a(f's_add_u32 s{S_M0B}, s{S_M0B}, 8192')
    fstamp(a,'pref1')
    a('s_waitcnt vmcnt(0)')
    fstamp(a,'pref2')
    a(f's_mov_b32 s{S_BB}, 0')
    a.label('L_ldbx')
    a.c('==== loader P2')
    vm=VM(a)
    a(f's_sub_u32 s{S_LI}, s{S_W}, 4')
    a(f'v_lshlrev_b32 v1, 4, v0')
    a(f's_mul_i32 s{S_T0}, s{S_LI}, 3072')
    a(f'v_add_u32 v1, s{S_T0}, v1')
    a(f's_lshl_b32 s{S_T0}, s{S_BP}, 5')
    a(f's_lshl_b32 s{S_T1}, s{S_KS}, 3')
    a(f's_add_u32 s{S_T0}, s{S_T0}, s{S_T1}')
    a(f's_mul_i32 s{S_T3}, s{S_T0}, 24576')
    a(f'v_lshrrev_b32 v2, 3, v0')
    a(f'v_and_b32 v3, 7, v0')
    a(f'v_min_u32 v3, 5, v3')
    a(f'v_lshlrev_b32 v3, 3, v3')
    a(f'v_lshl_add_u32 v2, v2, 6, v3')
    a(f's_lshl_b32 s{S_T0}, s{S_KS}, 3')
    a(f's_add_u32 s{S_T0}, s{S_T0}, s{S_BP}')
    a(f's_lshl_b32 s{S_T0}, s{S_T0}, 9')
    a(f's_add_u32 s{S_MT}, s{S_T0}, {WS_FO}')
    S_OK=96
    if OPT['stamps']==2: S_OK=94
    a(f's_mov_b64 s[{S_OK}:{S_OK+1}], 0')
    if OPT['stamps']==1:
        a('s_waitcnt lgkmcnt(0)')
        a(f's_mov_b32 s{S_ST+8}, 0'); a(f's_mov_b32 s{S_ST+9}, 0')
    def gate(j):
        head_of(a,j,S_CUR,S_T1)
        a(f's_lshl_b32 s{S_CUR}, s{S_CUR}, 3')
        a(f's_mov_b32 s{S_CNT}, {SPIN}')
        a.label(f'L_g{j}')
        a(f's_lshr_b64 s[{S_T1}:{S_T2}], s[{S_OK}:{S_OK+1}], s{S_CUR}')
        a(f's_and_b32 s{S_T1}, s{S_T1}, 0xff')
        a(f's_cmp_eq_u32 s{S_T1}, 0xff')
        if OPT['nochk']: a(f's_branch L_gd{j}')
        a(f's_cbranch_scc1 L_gd{j}')
        a(f's_sub_u32 s{S_CNT}, s{S_CNT}, 1')
        a(f's_cmp_gt_i32 s{S_CNT}, 0')
        a(f's_cbranch_scc0 L_gd{j}')
        a(f'buffer_load_dwordx2 v[12:13], v2, s[{R_WS}:{R_WS+3}], s{S_MT} offen sc1')
        a('s_waitcnt vmcnt(0)')
        a(f'v_cmp_eq_u64 s[{S_OK}:{S_OK+1}], s[{S_N}:{S_N+1}], v[12:13]')
        a(f's_branch L_g{j}')
        a.label(f'L_gd{j}')
        if OPT['stamps']==1:
            a(f's_sub_u32 s{S_CNT}, {SPIN}, s{S_CNT}')
            a(f's_add_u32 s{S_ST+8+(j>1)}, s{S_ST+8+(j>1)}, s{S_CNT}')
    def offs(st):
        stage_of(a,st,S_T0,S_T1)
        a(f's_lshl_b32 s{S_BO}, s{S_T0}, 17')
        a(f's_mul_i32 s{S_AO}, s{S_T0}, 12288')
        a(f's_add_u32 s{S_AO}, s{S_AO}, s{S_T3}')
    VA2=[1,1,1]
    fstamp(a,'preBX')
    a('s_barrier')
    stamp(a,6)
    fstamp(a,'BX')
    a(f's_cmp_eq_u32 s{S_BB}, 1')
    a('s_cbranch_scc0 L_nofl')
    if OPT['ofl']==1: oflag()
    a.label('L_nofl')
    a('s_barrier')
    fstamp(a,'2B0')
    gate(1)
    stamp(a,7)
    fstamp(a,'poll')
    offs(2); issueA(R_WS,VA2,2,2,' sc1')
    offs(3); issueA(R_WS,VA2,3,3,' sc1')
    if OPT['g2']==0:
        gate(2); vm.q=[2]*3+[3]*3
        offs(4); issueA(R_WS,VA2,4,4,' sc1'); issueB(R_WO,V_B2,4,4)
    else:
        offs(4); issueB(R_WO,V_B2,4,'b4')
    for st in range(1,16):
        if st<15: vm.wait(st+1)
        if st==3 and OPT['g2']: vm.wait('b4')
        fstamp(a,f'2w{st+1}')
        a('s_barrier')
        fstamp(a,f'2B{st}')
        if st==1: stamp(a,8)
        if st==1 and OPT['g2']:
            gate(2)
            offs(4); issueA(R_WS,VA2,4,4,' sc1')
        if st+4<16:
            if (st+4)%2==0: gate((st+4)//2)
            offs(st+4); issueA(R_WS,VA2,st+4,st+4,' sc1'); issueB(R_WO,V_B2,st+4,st+4)
    fstamp_flush(a)
    if OPT['stamps'] in (1,2):
        stamp(a,9)
        a(f's_memtime s[{S_ST+22}:{S_ST+23}]')
        a(f's_cmp_eq_u32 s{S_W}, 4')
        a('s_cbranch_scc0 L_end')
        stamp_flush(a,'l',1)
    a.label('L_end')
    a('s_endpgm')
    return a

def kd(name, vg):
    return f""".p2align 6
.amdhsa_kernel {name}
  .amdhsa_next_free_vgpr {vg}
  .amdhsa_next_free_sgpr 102
  .amdhsa_accum_offset {vg}
  .amdhsa_group_segment_fixed_size 0
  .amdhsa_kernarg_size 64
  .amdhsa_user_sgpr_count 2
  .amdhsa_user_sgpr_kernarg_segment_ptr 1
  .amdhsa_system_sgpr_workgroup_id_x 1
.end_amdhsa_kernel
"""

def build():
    ref=open('cdna_kernels/'+NAME+'.s.ref').read().split('\n')
    hdr=[l for l in ref if l.startswith(';') and '@launch' not in l and 'Override' not in l and 'grid=ceil' not in l]
    out='\n'.join(hdr[:9])+'\n'
    if OPT['aslist']:
        global K
        K='mha_fused_kernel'
        if OPT['aslist']==3: out+='; @launch kernel=mha_empty_kernel grid=(256,1,1) block=(256,1,1) lds=0\n'
        out+='; @launch kernel=mha_fused_kernel grid=(256,1,1) block=(512,1,1) lds=163840\n'
        if OPT['aslist']==2: out+='; @launch kernel=mha_fused_kernel grid=(256,1,1) block=(512,1,1) lds=163840\n'
    else:
        out+='; @launch grid=(256,1,1) block=(512,1,1) lds=163840\n'
    out+='.amdgcn_target "amdgcn-amd-amdhsa--gfx950"\n.text\n'
    out+=build_kernel().text()
    if OPT['aslist']==3:
        out+='.globl mha_empty_kernel\n.p2align 8\n.type mha_empty_kernel,@function\nmha_empty_kernel:\n  s_endpgm\n'
    out+='.section .rodata,"a"\n'
    out+=kd(K,256)
    if OPT['aslist']==3: out+=kd('mha_empty_kernel',8)
    return out

if __name__=='__main__':
    dst='cdna_kernels/'+NAME+'.s'
    for x in sys.argv[1:]:
        if '=' in x:
            k,v=x.split('='); OPT[k]=int(v,0)
        else: dst=x
    open(dst,'w').write(build())
    if '_names' in OPT: open(dst+'.names','w').write('\n'.join(OPT['_names'])+'\n')
    print('wrote',dst)
```
